```python
import torch

def _softmax(x, axis=-1):
    return torch.softmax(x, dim=axis)

def _gelu(x):
    return torch.nn.functional.gelu(x, approximate='tanh')

def _silu(x):
    return torch.nn.functional.silu(x)

def _sigmoid(x):
    return torch.sigmoid(x)

def _layernorm(x, axis=-1, eps=1e-05):
    m = x.mean(dim=axis, keepdim=True)
    v = x.var(dim=axis, keepdim=True, unbiased=False)
    return (x - m) / torch.sqrt(v + eps)

def _scatter_add(tgt, idx, src, axis=0):
    return tgt.clone().index_add_(axis, idx, src)

def _segment_sum(src, seg, n):
    out = torch.zeros((n,) + src.shape[1:], dtype=src.dtype)
    return out.index_add_(0, seg, src)

def _pad(x, pw):
    flat = tuple((v for pair in reversed(pw) for v in pair))
    return torch.nn.functional.pad(x, flat)
kernel_name = 'gated_mix__memory_aug_recurrent_mem_tr__glu_gated_swiglu__prompt'

def setup_inputs():

    _w = lambda a: (lambda t: t.to(torch.bfloat16) if t.is_floating_point() else t)(torch.as_tensor(a))

    def _A_setup():
        B, S, Dm = (1, 2048, 640)
        H, Dh = (32, 128)
        M, seg = (8, 32)
        seg = min(seg, S)
        S = S // seg * seg
        return {'x': _w((lambda *s: torch.randn(*s, dtype=torch.bfloat16) * 0.05)(B, S, Dm)), 'mem0': _w((lambda *s: torch.randn(*s, dtype=torch.bfloat16) * 0.8)(B, M, Dm)), 'Wq': _w((lambda *s: torch.randn(*s, dtype=torch.bfloat16) * 1.6)(Dm, H, Dh) * Dm ** (-0.5)), 'Wk': _w((lambda *s: torch.randn(*s, dtype=torch.bfloat16) * 1.6)(Dm, H, Dh) * Dm ** (-0.5)), 'Wv': _w((lambda *s: torch.randn(*s, dtype=torch.bfloat16) * 0.8)(Dm, H, Dh) * Dm ** (-0.5)), 'Wo': _w((lambda *s: torch.randn(*s, dtype=torch.bfloat16) * 0.8)(H, Dh, Dm) * (H * Dh) ** (-0.5)), 'seg_len': seg}
    _A_in = _A_setup()

    def _B_setup():
        B, S, D, F = (1, 2048, 640, 1728)
        return {'x': _w((lambda *s: torch.randn(*s, dtype=torch.bfloat16) * 0.05)(B, S, D)), 'w1': _w((lambda *s: torch.randn(*s, dtype=torch.bfloat16) * 3.2)(D, F) * (2.0 / D) ** 0.5), 'w3': _w((lambda *s: torch.randn(*s, dtype=torch.bfloat16) * 3.2)(D, F) * (2.0 / D) ** 0.5), 'w2': _w((lambda *s: torch.randn(*s, dtype=torch.bfloat16) * 3.2)(F, D) * (2.0 / F) ** 0.5)}
    _B_in = _B_setup()
    return {'A_x': _A_in['x'], 'A_mem0': _A_in['mem0'], 'A_Wq': _A_in['Wq'], 'A_Wk': _A_in['Wk'], 'A_Wv': _A_in['Wv'], 'A_Wo': _A_in['Wo'], 'A_seg_len': _A_in['seg_len'], 'B_x': _B_in['x'], 'B_w1': _B_in['w1'], 'B_w3': _B_in['w3'], 'B_w2': _B_in['w2'], 'gate_w': _w((lambda *s: torch.randn(*s, dtype=torch.bfloat16) * 0.05)(640) * 16.0)}

def reference(A_x, A_mem0, A_Wq, A_Wk, A_Wv, A_Wo, A_seg_len, B_x, B_w1, B_w3, B_w2, gate_w):

    def _A_ref(x, mem0, Wq, Wk, Wv, Wo, seg_len):
        B, S, Dm = x.shape
        H, Dh = (Wq.shape[1], Wq.shape[2])
        M = mem0.shape[1]
        scale = Dh ** (-0.5)
        n_seg = S // seg_len
        L = M + seg_len
        idx = torch.arange(L)
        mask = (idx[:, None] < M) | (idx[:, None] >= idx[None, :])
        mem = mem0
        outs = []
        for s in range(n_seg):
            xs = x[:, s * seg_len:(s + 1) * seg_len, :].clone()
            h = torch.concatenate([mem, xs], axis=1)
            q = torch.einsum('btd,dhe->bhte', h, Wq)
            k = torch.einsum('btd,dhe->bhte', h, Wk)
            v = torch.einsum('btd,dhe->bhte', h, Wv)
            scores = torch.einsum('bhqe,bhke->bhqk', q, k) * scale
            scores = torch.where(mask[None, None], scores, -1000000000.0)
            p = _softmax(scores, axis=-1)
            o = torch.einsum('bhqk,bhke->bhqe', p, v)
            o = torch.einsum('bhte,hed->btd', o, Wo)
            mem = o[:, :M, :].clone()
            outs.append(o[:, M:, :])
        return torch.concatenate(outs, axis=1)

    def _B_ref(x, w1, w3, w2):
        gate = torch.einsum('bsd,df->bsf', x, w1)
        up = torch.einsum('bsd,df->bsf', x, w3)
        h = _silu(gate) * up
        out = torch.einsum('bsf,fd->bsd', h, w2)
        return out
    x = A_x
    g = _sigmoid((x * gate_w).sum(-1, keepdims=True))
    a = _A_ref(x, A_mem0, A_Wq, A_Wk, A_Wv, A_Wo, A_seg_len)
    b = _B_ref(x, B_w1, B_w3, B_w2)
    return g * a + (1 - g) * b
```

```python
import re
NAME = 'gated_mix__memory_aug_recurrent_mem_tr__glu_gated_swiglu__prompt'
HEADER = open('cdna_kernels/' + NAME + '.s.ref').read().split('; Override launch')[0]

REG_RE = re.compile(r'^(-|abs\()?([vas])(?:(\d+)|\[(\d+):(\d+)\])\)?$')
def regs_of(tok):
    tok = tok.strip()
    if tok in ('vcc',): return ['vcc']
    if tok in ('vcc_lo', 'vcc_hi'): return ['vcc']
    if tok in ('exec', 'exec_lo', 'exec_hi'): return ['exec']
    if tok == 'm0': return ['m0']
    if tok == 'scc': return []
    tok = tok.lstrip('-').replace('|', '')
    m = REG_RE.match(tok)
    if not m: return []
    k = m.group(2)
    if m.group(3) is not None: return [k + m.group(3)]
    return [k + str(i) for i in range(int(m.group(4)), int(m.group(5)) + 1)]

TRANS = ('v_exp_f32', 'v_log_f32', 'v_rcp_f32', 'v_rsq_f32', 'v_sqrt_f32', 'v_sin_f32', 'v_cos_f32', 'v_rcp_iflag_f32')
def split_ops(s):
    out, depth, cur = [], 0, ''
    for ch in s:
        if ch in '[(': depth += 1
        if ch in '])': depth -= 1
        if ch == ',' and depth == 0: out.append(cur.strip()); cur = ''
        else: cur += ch
    if cur.strip(): out.append(cur.strip())
    return out

class I:
    __slots__ = ('text', 'kind', 'op', 'w', 'r', 'A', 'B', 'C', 'passes', 'target', 'tok', 'wide', 'dpp', 'nop', 'extra', 'data')
    def __init__(self, text, tok=None):
        self.text = text; self.tok = tok
        self.w, self.r, self.A, self.B, self.C, self.data = [], [], [], [], [], []
        self.passes = 0; self.target = None; self.wide = False; self.dpp = False; self.nop = 1; self.extra = None
        t = text.split(';')[0].strip()
        if t.endswith(':'):
            self.kind = 'label'; self.op = t[:-1]; return
        if not t or t.startswith('.'):
            self.kind = 'none'; self.op = ''; return
        sp = t.split(None, 1)
        op = sp[0]; self.op = op
        rest = sp[1] if len(sp) > 1 else ''
        ops = split_ops(rest)
        mods = ''
        if ops:
            parts = ops[-1].split()
            ops[-1] = parts[0]; mods = ' '.join(parts[1:])
        R = [regs_of(o) for o in ops]
        flat = lambda L: [x for y in L for x in y]
        if op.startswith('v_mfma') or op.startswith('v_smfmac'):
            self.kind = 'mfma'
            self.passes = 8 if '32x32' in op else 4
            self.w = R[0]; self.A = R[1]; self.B = R[2]
            if op.startswith('v_smfmac'):
                self.C = R[0]; self.A = R[1] + R[3]
            else: self.C = R[3]
            self.r = self.A + self.B + self.C
        elif op.startswith('v_'):
            self.kind = 'valu'
            self.dpp = '_dpp' in op or 'quad_perm' in mods or 'row_' in mods
            if 'swap' in op:
                self.w = R[0] + R[1]; self.r = R[0] + R[1]
            elif op.startswith('v_cmp'):
                self.w = R[0]; self.r = flat(R[1:])
            elif op.startswith(('v_add_co', 'v_sub_co', 'v_addc_co', 'v_subb_co', 'v_mad_u64')):
                self.w = R[0] + R[1]; self.r = flat(R[2:])
            else:
                self.w = R[0]; self.r = flat(R[1:])
                if op.startswith(('v_fmac', 'v_dot2c', 'v_pk_fmac', 'v_writelane')) or self.dpp: self.r = self.r + R[0]
        elif op.startswith('buffer_') or op.startswith('global_'):
            self.kind = 'vmem'
            allmods = mods.split()
            if op.startswith(('buffer_wbl2', 'buffer_inv')):
                pass
            elif 'lds' in allmods or '_lds_' in op:
                self.r = flat(R) + ['m0']; self.extra = 'ldsdma'
            elif '_load' in op:
                self.w = R[0]; self.r = flat(R[1:])
            elif '_store' in op:
                self.r = flat(R); self.wide = op.endswith(('x3', 'x4'))
                self.data = R[0] if op.startswith('buffer_') else R[1]
            elif '_atomic' in op:
                self.r = flat(R)
                if 'sc0' in allmods: self.w = R[0]
            else: raise ValueError(text)
        elif op.startswith('ds_'):
            self.kind = 'ds'
            if op.startswith(('ds_read', 'ds_bpermute', 'ds_permute', 'ds_swizzle')):
                self.w = R[0]; self.r = flat(R[1:])
            elif op.startswith('ds_write') or op.startswith('ds_add') or op.startswith('ds_max') or op.startswith('ds_or'):
                if '_rtn' in op: self.w = R[0]; self.r = flat(R[1:])
                else: self.r = flat(R)
            else: raise ValueError(text)
        elif op.startswith(('s_load', 's_memtime', 's_memrealtime', 's_buffer_load')):
            self.kind = 'smem'; self.w = R[0]; self.r = flat(R[1:])
        elif op == 's_waitcnt':
            self.kind = 'wait'
            m = re.search(r'vmcnt\((\d+)\)', t); l = re.search(r'lgkmcnt\((\d+)\)', t)
            self.extra = (int(m.group(1)) if m else None, int(l.group(1)) if l else None)
        elif op == 's_nop':
            self.kind = 'nop'; self.nop = int(ops[0], 0) + 1
        elif op.startswith(('s_branch', 's_cbranch')):
            self.kind = 'branch'; self.target = ops[0]
            if 'vcc' in op: self.r = ['vcc']
        elif op in ('s_endpgm',):
            self.kind = 'end'
        elif op.startswith('s_'):
            self.kind = 'salu'
            if op.startswith(('s_cmp', 's_barrier', 's_sleep', 's_setprio', 's_bitcmp', 's_setreg')):
                self.r = flat(R)
            else:
                self.w = R[0] if R else []; self.r = flat(R[1:])
                if 'saveexec' in op: self.w = self.w + ['exec']
        else:
            raise ValueError('unknown instr: ' + text)

class State:
    def __init__(self):
        self.vm = {}; self.lg = {}; self.smem = set(); self.hz = {}
    def copy(self):
        s = State(); s.vm = dict(self.vm); s.lg = dict(self.lg); s.smem = set(self.smem); s.hz = dict(self.hz); return s
    def merge(self, o):
        ch = False
        for mine, other in ((self.vm, o.vm), (self.lg, o.lg), (self.hz, o.hz)):
            for k, v in other.items():
                if k not in mine or v < mine[k]: mine[k] = v; ch = True
        if not o.smem <= self.smem: self.smem |= o.smem; ch = True
        return ch
    def advance(self, n):
        self.hz = {k: v + n for k, v in self.hz.items() if v + n < 24}

class Asm:
    def __init__(self):
        self.ins = []; self.nlabel = 0
    def __call__(self, s, tok=None):
        for l in s.strip('\n').split('\n'):
            l = l.strip()
            if l: self.ins.append(I(l, tok))
    def label(self, name): self.ins.append(I(name + ':'))
    def newlabel(self, base='L'):
        self.nlabel += 1; return f'{base}_{self.nlabel}'
    def comment(self, s): self.ins.append(I('; ' + s))
    def wait_tok(self, *toks):
        i = I('; wait ' + ' '.join(toks)); i.kind = 'waittok'; i.extra = toks; self.ins.append(i)
    def srd(self, d, base, nbytes):
        self(f's_mov_b32 s{d}, s{base}'); self(f's_mov_b32 s{d+1}, s{base+1}')
        self(f's_mov_b32 s{d+2}, {nbytes:#x}'); self(f's_mov_b32 s{d+3}, 0x00020000')

    def _need(self, st, i):
        vmw = lgw = None
        touched = i.r + i.w
        if i.kind == 'waittok': touched = list(i.extra)
        for r in touched:
            waw = r in i.w and r not in i.r
            if r in st.vm and not (waw and i.kind == 'vmem'): vmw = st.vm[r] if vmw is None else min(vmw, st.vm[r])
            if r in st.lg and not (waw and i.kind == 'ds'): lgw = st.lg[r] if lgw is None else min(lgw, st.lg[r])
            if r in st.smem: lgw = 0
        if lgw is not None and st.smem: lgw = 0
        if vmw is not None: vmw = min(vmw, 63)
        if lgw is not None: lgw = min(lgw, 15)
        need = 0
        def req(key, n):
            nonlocal need
            if key in st.hz: need = max(need, n - st.hz[key])
        k = i.kind
        if k == 'mfma':
            for r in i.r: req(('valu', r), 2)
            for r in i.A + i.B:
                req(('x4', r), 8); req(('x8', r), 12)
            sig = (i.passes, tuple(i.C))
            for r in i.C:
                if ('xs', sig) in st.hz and (('x4' if i.passes == 4 else 'x8'), r) in st.hz and st.hz[('xs', sig)] == st.hz[(('x4' if i.passes == 4 else 'x8'), r)]:
                    req(('x8' if i.passes == 4 else 'x4', r), 10 if i.passes == 4 else 6)
                else:
                    req(('x4', r), 6); req(('x8', r), 10)
            for r in i.w:
                if r not in i.C: req(('x4', r), 8); req(('x8', r), 12)
            req(('vexec', 'exec'), 4)
        if k in ('valu', 'vmem', 'ds'):
            for r in i.r + i.w:
                req(('x4', r), 8); req(('x8', r), 12)
        if k == 'valu':
            for r in i.w:
                req(('c4', r), 3); req(('c8', r), 7); req(('wstore', r), 2)
            for r in i.r:
                if i.dpp or i.op.startswith('v_permlane'): req(('valu', r), 2)
                if i.op.startswith(('v_readlane', 'v_readfirstlane')): req(('valu', r), 1)
                if not i.op.startswith(TRANS): req(('trans', r), 1)
                if r[0] == 's' or r == 'vcc': req(('vsgpr', r), 4 if i.op.startswith(('v_readlane', 'v_writelane')) else 2)
        if k in ('vmem', 'ds'):
            for r in i.w: req(('wstore', r), 1)
            for r in i.r:
                if r[0] == 's' or r == 'vcc': req(('vsgpr', r), 5)
                req(('trans', r), 1)
            if i.extra == 'ldsdma': req(('m0', 'm0'), 1)
        if k in ('salu', 'branch', 'smem'):
            for r in i.r:
                if r[0] == 's' or r == 'vcc': req(('vsgpr', r), 1)
        return vmw, lgw, need

    def _apply_wait(self, st, vm, lg):
        if vm is not None: st.vm = {k: v for k, v in st.vm.items() if v < vm}
        if lg is not None:
            st.lg = {k: v for k, v in st.lg.items() if v < lg}
            if lg == 0: st.smem = set()

    def _issue(self, st, i):
        k = i.kind
        st.advance(i.nop)
        if k == 'vmem':
            st.vm = {a: b + 1 for a, b in st.vm.items()}
            for r in i.w: st.vm[r] = 0
            if i.tok: st.vm[i.tok] = 0
            if i.wide:
                for r in i.data: st.hz[('wstore', r)] = 0
        elif k == 'ds':
            st.lg = {a: b + 1 for a, b in st.lg.items()}
            for r in i.w: st.lg[r] = 0
            if i.tok: st.lg[i.tok] = 0
        elif k == 'smem':
            for r in i.w: st.smem.add(r)
        elif k == 'wait': self._apply_wait(st, *i.extra)
        elif k == 'mfma':
            for r in i.w:
                st.hz[('x4' if i.passes == 4 else 'x8', r)] = 0
                st.hz.pop(('x8' if i.passes == 4 else 'x4', r), None) if False else None
            st.hz[('xs', (i.passes, tuple(i.w)))] = 0
            for r in i.C: st.hz[('c4' if i.passes == 4 else 'c8', r)] = 0
        elif k == 'valu':
            for r in i.w:
                if r[0] in 'va' and r != 'vcc':
                    st.hz[('valu', r)] = 0
                    if i.op.startswith(TRANS): st.hz[('trans', r)] = 0
                else: st.hz[('vsgpr', r)] = 0
            if i.op.startswith('v_cmpx'): st.hz[('vexec', 'exec')] = 0
        elif k == 'salu':
            if 'm0' in i.w: st.hz[('m0', 'm0')] = 0

    def text(self):
        incoming = {}
        for it in range(12):
            out = []; st = State(); changed = False; live = True
            for i in self.ins:
                if i.kind == 'label':
                    if not live: st = State()
                    if i.op in incoming: st.merge(incoming[i.op])
                    live = True
                    out.append(i.text); continue
                if i.kind == 'none':
                    out.append('    ' + i.text); continue
                vm, lg, need = self._need(st, i)
                if vm is not None or lg is not None:
                    out.append('    s_waitcnt' + (f' vmcnt({vm})' if vm is not None else '') + (f' lgkmcnt({lg})' if lg is not None else ''))
                    self._apply_wait(st, vm, lg); st.advance(1); need -= 1
                while need > 0:
                    n = min(need, 16); out.append(f'    s_nop {n-1}'); st.advance(n); need -= n
                if i.kind == 'waittok': continue
                out.append('    ' + i.text)
                self._issue(st, i)
                if i.kind == 'branch':
                    if i.target not in incoming: incoming[i.target] = st.copy(); changed = True
                    elif incoming[i.target].merge(st): changed = True
                    if i.op == 's_branch': live = False
                if i.kind == 'end': live = False
            if not changed: break
        else:
            raise RuntimeError('no convergence')
        return '\n'.join(out) + '\n'

def kernel_wrap(kernels, launches):
    out = HEADER
    if len(launches) == 1 and launches[0][0] == NAME + '_kernel':
        l, g, b, lds = launches[0]
        out += f'; @launch grid=({g[0]},{g[1]},{g[2]}) block=({b[0]},{b[1]},{b[2]}) lds={lds}\n'
    else:
        for l, g, b, lds in launches:
            out += f'; @launch kernel={l} grid=({g[0]},{g[1]},{g[2]}) block=({b[0]},{b[1]},{b[2]}) lds={lds}\n'
    out += '.amdgcn_target "amdgcn-amd-amdhsa--gfx950"\n.text\n'
    for label, body, vgpr, accum, sgpr in kernels:
        out += f'.globl {label}\n.p2align 8\n.type {label},@function\n{label}:\n{body}    s_endpgm\n'
    out += '.section .rodata,"a"\n'
    for label, body, vgpr, accum, sgpr in kernels:
        out += f'''.p2align 6
.amdhsa_kernel {label}
  .amdhsa_next_free_vgpr {vgpr}
  .amdhsa_next_free_sgpr {sgpr}
  .amdhsa_accum_offset {accum}
  .amdhsa_group_segment_fixed_size 0
  .amdhsa_kernarg_size 120
  .amdhsa_user_sgpr_count 2
  .amdhsa_user_sgpr_kernarg_segment_ptr 1
  .amdhsa_system_sgpr_workgroup_id_x 1
  .amdhsa_float_denorm_mode_32 3
.end_amdhsa_kernel
'''
    return out
```

```python
MB = 1 << 20
KXG = 0 * MB
VXG = 16 * MB
QXG = 32 * MB
OG  = 48 * MB
HG  = 64 * MB
GG  = 76 * MB
KVM = 80 * MB
PART = 100 * MB
PART_SLOT = 80 * 4096
MSL = 101 * MB
WST = 102 * MB
FLG = 110 * MB
D_REG, D_XCC, D_KV, D_P1B, D_KV0 = 252, 248, 128, 192, 64
```

```python
from al import *
from layout import *
import math, struct
def f2u(x): return struct.unpack('<I', struct.pack('<f', x))[0]
def vr(b, n): return f'v[{b}:{b+n-1}]'
LOG2E = math.log2(math.e)
SCL = (128 ** -0.5) * LOG2E
DPPM = 'row_mask:0xf bank_mask:0xf'
SW = 31
SU = 30
L16, VTR, VXS, VXR, VT0 = 0, 1, 2, 3, 4

def wreg(i, nv):
    return ('a', 16 * i) if i < 16 else ('v', 256 - 16 * nv + 16 * (i - 16))

def load_units(a, units, nslots, ringbase_s, tag, toff=32):
    def dma(n):
        srd, sb, imms, vo, _ = units[n]
        for i in range(4):
            a(f's_add_u32 s34, s{sb}, {imms[i]}')
            a(f's_add_u32 m0, s{ringbase_s}, {(n % nslots) * 4096 + i * 1024}')
            a(f'buffer_load_dwordx4 v{vo}, s[{srd}:{srd+3}], s34 offen lds', tok=f'{tag}d{n}')
    for n in range(min(nslots, len(units))): dma(n)
    for n, u in enumerate(units):
        a.wait_tok(f'{tag}d{n}')
        k, b = u[4]
        for t in range(2):
            for rp in range(4):
                a(f'ds_read_b64_tr_b16 {k}[{b+8*t+2*rp}:{b+8*t+2*rp+1}], v{VTR} offset:{(n % nslots)*4096 + rp*1024 + t*toff}', tok=f'{tag}t{n}')
        if n + nslots < len(units):
            a.wait_tok(f'{tag}t{n}')
            dma(n + nslots)

def worker_setup(a):
    a('v_lshrrev_b32 v16, 6, v0'); a(f'v_readfirstlane_b32 s{SW}, v16')
    a('v_and_b32 v17, 63, v0')
    a(f'v_lshlrev_b32 v{L16}, 4, v17')
    a('v_lshrrev_b32 v18, 4, v17'); a('v_lshlrev_b32 v18, 1, v18'); a('v_mov_b32 v19, 0x78'); a('v_lshrrev_b32 v19, v18, v19'); a('v_xor_b32 v19, v19, v17'); a('v_and_b32 v19, 3, v19')
    a('v_lshrrev_b32 v20, 2, v17'); a(f'v_mul_u32_u24 v{VXS}, 1280, v20'); a(f'v_lshl_add_u32 v{VXS}, v19, 4, v{VXS}')
    a('v_bfe_u32 v18, v17, 2, 2'); a('v_lshlrev_b32 v18, 1, v18'); a('v_mov_b32 v19, 0x78'); a('v_lshrrev_b32 v19, v18, v19'); a('v_lshrrev_b32 v21, 4, v17'); a('v_xor_b32 v19, v19, v21'); a('v_and_b32 v19, 3, v19')
    a('v_and_b32 v20, 15, v17'); a(f'v_lshlrev_b32 v{VXR}, 6, v20'); a(f'v_lshl_add_u32 v{VXR}, v19, 4, v{VXR}')

def set_vtr(a, ring_s, sh=3):
    a(f'v_lshrrev_b32 v{VT0}, 6, v{L16}'); a(f'v_lshlrev_b32 v{VT0}, 6, v{VT0}'); a(f'v_bfe_u32 v{VT0+1}, v{L16}, 4, 2')
    a(f'v_lshl_add_u32 v{VTR}, v{VT0+1}, {sh}, v{VT0}'); a(f'v_add_u32 v{VTR}, s{ring_s}, v{VTR}')

def lane_rows(a, dst, gmul, rfun, stride):
    t = VT0
    a(f'v_lshrrev_b32 v{t}, 8, v{L16}'); a(f'v_mul_u32_u24 v{t}, {gmul}, v{t}')
    a(f'v_bfe_u32 v{t+1}, v{L16}, 6, 2')
    if rfun == 'r': a(f'v_add_u32 v{t}, v{t}, v{t+1}')
    else:
        a(f'v_lshrrev_b32 v{t+2}, 1, v{t+1}'); a(f'v_add_u32 v{t}, v{t}, v{t+2}'); a(f'v_and_b32 v{t+1}, 1, v{t+1}'); a(f'v_lshl_add_u32 v{t}, v{t+1}, 4, v{t}')
    a(f's_mov_b32 s34, {stride}'); a(f'v_mul_lo_u32 v{t}, v{t}, s34'); a(f'v_bfe_u32 v{t+1}, v{L16}, 4, 2'); a(f'v_lshl_add_u32 v{dst}, v{t+1}, 4, v{t}')

XB = 40960
RT = True
RTOFF = FLG + 0x200000
def rt(a, t=VT0+6):
    if not RT: return
    a('s_memrealtime s[72:73]'); a('s_waitcnt lgkmcnt(0)')
    a(f's_lshl_b32 s74, s2, 2'); a(f's_add_u32 s74, s74, s{SW}'); a('s_lshl_b32 s74, s74, 7'); a(f's_add_u32 s74, s74, {RTOFF}')
    a('s_add_u32 s74, s74, s75'); a('s_add_u32 s75, s75, 4')
    a(f'v_mov_b32 v{t}, 0'); a(f'v_mov_b32 v{t+1}, s72')
    a(f'buffer_store_dword v{t+1}, v{t}, s[12:15], s74 offen')
def gen_gemm1(a, kind, P):
    stride = 3456 if kind == 'h' else 8192
    ostride = {'kq': 262144, 'v': 262144, 'h': 131072}[kind]
    WO = 12
    XA = 13
    ACC = 16
    XF = 48
    OUT = 80
    a(f's_mul_i32 s33, s{SW}, {7*4096}'); a(f's_add_u32 s33, s33, {XB}')
    set_vtr(a, 33)
    lane_rows(a, WO, 8, 'r', stride)
    a(f's_mul_i32 s50, s{SW}, 10240')
    a(f's_mul_i32 s51, s{SW}, 320')
    def xdma(n, buf_s, tile_s, tok):
        return [f's_add_u32 s34, s{tile_s}, {(n >> 1) * 64 + (n & 1) * 20480}', f's_add_u32 m0, s{buf_s}, {n * 1024}',
                (f'buffer_load_dwordx4 v{VXS}, s[16:19], s34 offen lds', tok)]
    def emit(p):
        if isinstance(p, tuple): a(p[0], tok=p[1])
        else: a(p)
    a(f's_mul_i32 s52, s46, 40960'); a('s_add_u32 s52, s52, s51'); a('s_mul_i32 s54, s47, 40960'); a('s_mov_b32 s53, s50')
    a('s_barrier')
    for n in range(10):
        for p in xdma(n, 53, 52, f'{P}x'): emit(p)
    units = []
    for j in range(10):
        for pr in range(2):
            units.append((36 + 4 * pr, 44 + pr, [(64 * j + 32 * (i >> 1) + 4 * (i & 1)) * stride for i in range(4)], WO, wreg(2 * j + pr, 4)))
    load_units(a, units, 7, 33, P + 'w')
    a('s_waitcnt vmcnt(0) lgkmcnt(0)'); a('s_barrier')
    rt(a)
    a('s_add_u32 s52, s52, s54'); a(f's_add_u32 s53, s50, {XB}')
    for n in range(10):
        for p in xdma(n, 53, 52, f'{P}x1'): emit(p)
    a('s_add_u32 s52, s52, s54'); a(f's_add_u32 s53, s50, {2*XB}')
    a(f's_mov_b32 s55, 0')
    a(f's_mul_i32 s56, s46, {ostride}'); a('s_add_u32 s56, s56, s48'); a(f's_mul_i32 s57, s47, {ostride}')
    a.label(f'{P}_tile')
    a(f'v_add_u32 v{XA}, s55, v{VXR}')
    side = []
    for n in range(10): side += [xdma(n, 53, 52, f'{P}xn')]
    def rdx(ks):
        for mt in range(2): a(f'ds_read_b128 {vr(XF + 8*(ks % 4) + 4*mt, 4)}, v{XA} offset:{(2*ks+mt)*1024}')
    rdx(0); rdx(1); rdx(2)
    for ks in range(20):
        j, kh = ks >> 1, ks & 1
        n = 0
        for pr in range(2):
            k, b = wreg(2 * j + pr, 4)
            for t in range(2):
                Wf = f'{k}[{b+8*t+4*kh}:{b+8*t+4*kh+3}]'
                for mt in range(2):
                    c = vr(ACC + 16 * mt + 8 * pr + 4 * t, 4); Xf = vr(XF + 8 * (ks % 4) + 4 * mt, 4)
                    A_, B_ = (Xf, Wf) if kind == 'v' else (Wf, Xf)
                    a(f'v_mfma_f32_16x16x32_bf16 {c}, {A_}, {B_}, {"0" if ks == 0 else c}')
                    n += 1
                    if n == 1 and ks + 3 < 20: rdx(ks + 3)
                    if n == 4 and side and ks >= 1:
                        for p in side.pop(0): emit(p)
    if kind == 'kq':
        for mt in range(2):
            for pr in range(2):
                o = OUT + 8 * mt + 4 * pr; b = ACC + 16 * mt + 8 * pr
                for r in range(4): a(f'v_cvt_pk_bf16_f32 v{o+r}, v{b+r}, v{b+4+r}')
                if mt == 1 and pr == 0: a('s_add_u32 s35, s56, 4096')
                a(f'buffer_store_dwordx4 {vr(o,4)}, v{L16}, s[12:15], s{35 if mt else 56} offen offset:{pr*1024} sc1')
    elif kind == 'v':
        for T in range(4):
            o = OUT + 4 * T
            for mt in range(2):
                b = ACC + 16 * mt + 4 * T
                a(f'v_cvt_pk_bf16_f32 v{o+2*mt}, v{b}, v{b+1}'); a(f'v_cvt_pk_bf16_f32 v{o+2*mt+1}, v{b+2}, v{b+3}')
            a(f'buffer_store_dwordx4 {vr(o,4)}, v{L16}, s[12:15], s56 offen offset:{T*1024} sc1')
    else:
        a(f's_mov_b32 s35, {f2u(-LOG2E):#x}')
        for mt in range(2):
            G = ACC + 16 * mt; U = G + 8; E = OUT + 8
            for r in range(8): a(f'v_mul_f32 v{E+r}, s35, v{G+r}')
            for r in range(8): a(f'v_exp_f32 v{E+r}, v{E+r}')
            for r in range(8): a(f'v_mul_f32 v{G+r}, v{G+r}, v{U+r}')
            for r in range(8): a(f'v_add_f32 v{E+r}, 1.0, v{E+r}')
            for r in range(8): a(f'v_rcp_f32 v{E+r}, v{E+r}')
            for r in range(8): a(f'v_mul_f32 v{G+r}, v{G+r}, v{E+r}')
            o = OUT + 4 * mt
            for r in range(4): a(f'v_cvt_pk_bf16_f32 v{o+r}, v{G+r}, v{G+4+r}')
            if mt == 1: a('s_add_u32 s58, s56, 65536')
            a(f'buffer_store_dwordx4 {vr(o,4)}, v{L16}, s[12:15], s{58 if mt else 56} offen sc1')
    nst = 2 if kind == 'h' else 4
    a('s_add_u32 s46, s46, s47'); a('s_add_u32 s52, s52, s54'); a('s_add_u32 s56, s56, s57')
    a(f's_add_u32 s53, s55, s50')
    a(f's_add_u32 s55, s55, {XB}'); a(f's_cmp_eq_u32 s55, {3*XB}'); a('s_cselect_b32 s55, 0, s55')
    a(f's_waitcnt vmcnt({10 + nst})')
    if kind != 'h':
        a('s_add_u32 s59, s59, 1'); a('s_cmp_lg_u32 s59, 4'); a(f's_cbranch_scc1 {P}_nosig')
        signal(a, D_KV0)
        a(f's_waitcnt vmcnt(0)')
        a.label(f'{P}_nosig')
    a('s_barrier')
    a('s_cmp_lt_u32 s46, 64'); a(f's_cbranch_scc1 {P}_tile')
    a('s_waitcnt vmcnt(0)')

def signal(a, off):
    a(f'v_mov_b32 v{VT0}, {off}'); a(f'v_mov_b32 v{VT0+1}, 1')
    a('s_mov_b64 exec, 1')
    a(f'buffer_atomic_add v{VT0+1}, v{VT0}, s[8:11], 0 offen')
    a('s_mov_b64 exec, -1')

def wait_dbg(a, off, target, lab, fail, t=VT0):
    a(f'v_mov_b32 v{t}, {off}'); a('s_mov_b32 s34, 0')
    a.label(lab)
    a(f'buffer_load_dword v{t+1}, v{t}, s[8:11], 0 offen sc1')
    a('s_add_u32 s34, s34, 1'); a('s_cmp_gt_u32 s34, 2000000'); a(f's_cbranch_scc1 {fail}')
    a(f'v_readfirstlane_b32 s35, v{t+1}'); a(f's_cmp_ge_u32 s35, {target}'); a(f's_cbranch_scc1 {lab}_ok')
    a('s_sleep 8'); a(f's_branch {lab}')
    a.label(lab + '_ok')

def gen_gate(a, nwaves):
    GW, XF, D = 16, 96, 176
    a(f'v_lshrrev_b32 v{VT0}, 8, v{L16}'); a(f'v_lshlrev_b32 v{VT0}, 4, v{VT0}')
    for ks in range(20): a(f'buffer_load_dwordx4 {vr(GW+4*ks,4)}, v{VT0}, s[36:39], 0 offen offset:{64*ks}')
    a(f'v_bfe_u32 v{VT0+1}, v{L16}, 4, 4'); a(f'v_mul_u32_u24 v{VT0+2}, 1280, v{VT0+1}'); a(f'v_add_u32 v{VT0+2}, v{VT0+2}, v{VT0}')
    a(f'v_lshlrev_b32 v{VT0+3}, 2, v{VT0+1}')
    a(f's_mov_b32 s35, {f2u(-LOG2E):#x}')
    a.label('LG_loop')
    a('s_mul_i32 s50, s46, 20480'); a('s_lshl_b32 s51, s46, 6'); a(f's_add_u32 s51, s51, {GG}')
    for ks in range(20): a(f'buffer_load_dwordx4 {vr(XF+4*ks,4)}, v{VT0+2}, s[16:19], s50 offen offset:{64*ks}')
    for ks in range(20): a(f'v_mfma_f32_16x16x32_bf16 {vr(D,4)}, {vr(GW+4*ks,4)}, {vr(XF+4*ks,4)}, {"0" if ks == 0 else vr(D,4)}')
    a(f'v_mul_f32 v{D}, s35, v{D}'); a(f'v_exp_f32 v{D}, v{D}'); a(f'v_add_f32 v{D}, 1.0, v{D}'); a(f'v_rcp_f32 v{D}, v{D}')
    a('s_mov_b64 exec, 0xffff')
    a(f'buffer_store_dword v{D}, v{VT0+3}, s[12:15], s51 offen sc1')
    a('s_mov_b64 exec, -1')
    a(f's_add_u32 s46, s46, {nwaves}'); a('s_cmp_lt_u32 s46, 128'); a('s_cbranch_scc1 LG_loop')
    a('s_waitcnt vmcnt(0)')

def gen_phase1(a):
    a('s_load_dwordx2 s[20:21], s[0:1], 0')
    a('s_load_dwordx4 s[24:27], s[0:1], 24')
    a('s_load_dwordx2 s[22:23], s[0:1], 16')
    a('s_load_dwordx4 s[60:63], s[0:1], 64')
    a('s_load_dwordx2 s[64:65], s[0:1], 88')
    worker_setup(a)
    a('s_mov_b32 s75, 0'); rt(a)
    a(f'v_mov_b32 v{VT0}, 0'); a(f'v_lshrrev_b32 v{VT0+1}, 2, v{L16}')
    a(f's_lshl_b32 s34, s{SU}, 7'); a(f's_add_u32 s34, s34, {FLG}')
    a('s_mov_b64 exec, 0xffffffff')
    a(f'buffer_store_dword v{VT0}, v{VT0+1}, s[12:15], s34 offen sc1')
    a('s_mov_b64 exec, -1')
    a('s_waitcnt lgkmcnt(0)')
    a.srd(16, 20, 2621440)
    a(f's_mul_i32 s66, s{SU}, 9363'); a('s_lshr_b32 s66, s66, 16'); a('s_mul_i32 s34, s66, 7'); a(f's_sub_u32 s67, s{SU}, s34')
    a('s_mov_b32 s46, s67'); a('s_mov_b32 s47, 7')
    a('s_and_b32 s68, s66, 15'); a('s_lshl_b32 s44, s68, 9'); a(f's_lshl_b32 s34, s{SW}, 7'); a('s_add_u32 s44, s44, s34'); a('s_add_u32 s45, s44, 64')
    a('s_lshl_b32 s69, s68, 14'); a(f's_lshr_b32 s34, s{SW}, 1'); a('s_lshl_b32 s34, s34, 13'); a('s_add_u32 s69, s69, s34')
    a(f's_and_b32 s70, s{SW}, 1'); a('s_mov_b32 s59, 0')
    a('s_cmp_ge_u32 s66, 16'); a('s_cbranch_scc1 LW_v')
    a.srd(36, 24, 5242880); a.srd(40, 24, 5242880)
    a('s_lshl_b32 s48, s70, 11'); a('s_add_u32 s48, s48, s69'); a(f's_add_u32 s48, s48, {KXG}')
    a('s_mov_b32 s71, 0')
    a.label('LW_kq')
    gen_gemm1(a, 'kq', 'LK')
    a('s_cmp_eq_u32 s71, 1'); a('s_cbranch_scc1 LW_p1b_done')
    a('s_branch LW_p1a_done')
    a.label('LW_v')
    a.srd(36, 26, 5242880); a.srd(40, 26, 5242880)
    a('s_lshl_b32 s48, s70, 12'); a('s_add_u32 s48, s48, s69'); a(f's_add_u32 s48, s48, {VXG}')
    gen_gemm1(a, 'v', 'LV')
    a.label('LW_p1a_done')
    signal(a, D_KV)
    rt(a)
    a('s_mov_b32 s46, s67'); a('s_mov_b32 s47, 7')
    a('s_cmp_ge_u32 s66, 16'); a('s_cbranch_scc1 LW_h')
    a.srd(36, 22, 5242880); a.srd(40, 22, 5242880)
    a('s_lshl_b32 s48, s70, 11'); a('s_add_u32 s48, s48, s69'); a(f's_add_u32 s48, s48, {QXG}')
    a('s_mov_b32 s71, 1')
    a('s_branch LW_kq')
    a.label('LW_h')
    a('s_cmp_ge_u32 s66, 30'); a('s_cbranch_scc1 LW_gate')
    a.srd(36, 60, 2211840); a.srd(40, 62, 2211840)
    a('s_lshl_b32 s34, s68, 2'); a(f's_add_u32 s34, s34, s{SW}')
    a('s_min_u32 s35, s34, 53'); a('s_lshl_b32 s44, s35, 6'); a('s_mov_b32 s45, s44')
    a('s_lshl_b32 s48, s34, 10'); a(f's_add_u32 s48, s48, {HG}')
    gen_gemm1(a, 'h', 'LH')
    a('s_branch LW_p1b_done')
    a.label('LW_gate')
    a.srd(36, 64, 1280)
    a(f's_sub_u32 s46, s{SU}, 210'); a('s_lshl_b32 s46, s46, 2'); a(f's_add_u32 s46, s46, s{SW}')
    gen_gate(a, 56)
    a.label('LW_p1b_done')
    signal(a, D_P1B)
    rt(a)


def poll_ws(a, t, soff, cond_fn, lab, fail, width=1, sleep=4):
    a(f'v_mov_b32 v{t}, 0'); a('s_mov_b32 s34, 0')
    a.label(lab)
    if width == 1: a(f'buffer_load_dword v{t+2}, v{t}, s[12:15], s{soff} offen sc1')
    else: a(f'buffer_load_dwordx4 {vr(t+2,4)}, v{t}, s[12:15], s{soff} offen sc1')
    a('s_add_u32 s34, s34, 1'); a('s_cmp_gt_u32 s34, 4000000'); a(f's_cbranch_scc1 {fail}')
    cond_fn()
    a(f's_cbranch_scc1 {lab}_ok')
    a(f's_sleep {sleep}'); a(f's_branch {lab}')
    a.label(lab + '_ok')

def gen_attn(a, fail):
    QF, KF, VF, KM, VM, SS, O, T = 16, 48, 80, 112, 128, 136, 160, 224
    SAA, SAB, SBB, SMA, SMB = SS, SS + 4, SS + 8, SS + 12, SS + 16
    a(f's_mov_b32 s54, {f2u(SCL):#x}')
    a(f'v_bfe_u32 v{T}, v{L16}, 4, 4'); a(f'v_lshrrev_b32 v{T+1}, 8, v{L16}'); a(f'v_lshlrev_b32 v{T+1}, 2, v{T+1}')
    for r in range(4):
        a(f'v_add_u32 v{T+2}, {r}, v{T+1}'); a(f'v_cmp_le_u32 s[{76+2*r}:{77+2*r}], v{T+2}, v{T}')
    a(f'v_mov_b32 v{VT0+8}, 0xff800000'); a(f'v_lshrrev_b32 v{VT0+9}, 1, v{L16}')
    NEG, L8 = VT0 + 8, VT0 + 9
    a('s_lshl_b32 s48, s47, 13'); a('s_lshl_b32 s49, s47, 7'); a(f's_add_u32 s49, s49, {FLG}'); a('s_lshl_b32 s50, s47, 12')
    a.label('LA_loop')
    a('s_lshl_b32 s51, s46, 18'); a('s_add_u32 s52, s51, s48')
    for nm, base, off in (('q', QF, QXG), ('k', KF, KXG), ('v', VF, VXG)):
        a(f's_add_u32 s53, s52, {off}'); a(f's_add_u32 s55, s53, 4096')
        for i in range(8): a(f'buffer_load_dwordx4 {vr(base+4*i,4)}, v{L16}, s[12:15], s{53 if i < 4 else 55} offen offset:{(i&3)*1024} sc1')
    for (d, kt, qt) in ((SAA, 0, 0), (SAB, 0, 1), (SBB, 1, 1)):
        for f in range(4): a(f'v_mfma_f32_16x16x32_bf16 {vr(d,4)}, {vr(KF+16*kt+4*f,4)}, {vr(QF+16*qt+4*f,4)}, {"0" if f == 0 else vr(d,4)}')
    for d in (SAA, SBB):
        for r in range(4): a(f'v_cndmask_b32 v{d+r}, v{NEG}, v{d+r}, s[{76+2*r}:{77+2*r}]')
    MA, MB, M2 = T, T + 1, T + 2
    a(f'v_max3_f32 v{MA}, v{SAA}, v{SAA+1}, v{SAA+2}'); a(f'v_max_f32 v{MA}, v{MA}, v{SAA+3}')
    a(f'v_max3_f32 v{MB}, v{SAB}, v{SAB+1}, v{SAB+2}'); a(f'v_max3_f32 v{MB}, v{MB}, v{SAB+3}, v{SBB}'); a(f'v_max3_f32 v{MB}, v{MB}, v{SBB+1}, v{SBB+2}'); a(f'v_max_f32 v{MB}, v{MB}, v{SBB+3}')
    def cond():
        a(f'v_min3_u32 v{VT0+2}, v{VT0+2}, v{VT0+3}, v{VT0+4}'); a(f'v_min_u32 v{VT0+2}, v{VT0+2}, v{VT0+5}')
        a(f'v_readfirstlane_b32 s35, v{VT0+2}'); a('s_cmp_gt_u32 s35, s46')
    poll_ws(a, VT0, 49, cond, 'LA_p', fail, width=4)
    a(f's_add_u32 s53, s52, {KVM}'); a('s_add_u32 s55, s53, 4096')
    for f in range(4): a(f'buffer_load_dwordx4 {vr(KM+4*f,4)}, v{L16}, s[12:15], s53 offen offset:{f*1024} sc1')
    for w in range(4): a(f'buffer_load_dwordx2 {vr(VM+2*w,2)}, v{L8}, s[12:15], s55 offen offset:{w*512} sc1')
    for f in range(4):
        for (d, qt) in ((SMA, 0), (SMB, 1)):
            a(f'v_mfma_f32_16x16x32_bf16 {vr(d,4)}, {vr(KM+4*f,4)}, {vr(QF+16*qt+4*f,4)}, {"0" if f == 0 else vr(d,4)}')
    a(f'v_max3_f32 v{MA}, v{MA}, v{SMA}, v{SMA+1}'); a(f'v_max3_f32 v{MB}, v{MB}, v{SMB}, v{SMB+1}')
    def xred(op, regs):
        for sw in ('v_permlane16_swap_b32', 'v_permlane32_swap_b32'):
            for i, m in enumerate(regs): a(f'v_mov_b32 v{M2+i}, v{m}')
            for i, m in enumerate(regs): a(f'{sw} v{m}, v{M2+i}')
            for i, m in enumerate(regs): a(f'{op} v{m}, v{m}, v{M2+i}')
    xred('v_max_f32', [MA, MB])
    a(f'v_mul_f32 v{MA}, s54, v{MA}'); a(f'v_mul_f32 v{MB}, s54, v{MB}')
    va = [SAA + r for r in range(4)] + [SMA, SMA + 1]
    vb = [SAB + r for r in range(8)] + [SMB, SMB + 1]
    for x in va: a(f'v_fma_f32 v{x}, v{x}, s54, -v{MA}')
    for x in vb: a(f'v_fma_f32 v{x}, v{x}, s54, -v{MB}')
    for x in va + vb: a(f'v_exp_f32 v{x}, v{x}')
    BA, BB, PA, PB = T + 8, T + 12, T + 16, T + 20
    a(f'v_cvt_pk_bf16_f32 v{BA}, v{SAA}, v{SAA+1}'); a(f'v_cvt_pk_bf16_f32 v{BA+1}, v{SAA+2}, v{SAA+3}'); a(f'v_mov_b32 v{BA+2}, 0'); a(f'v_mov_b32 v{BA+3}, 0')
    for i in range(4): a(f'v_cvt_pk_bf16_f32 v{BB+i}, v{SAB+2*i}, v{SAB+2*i+1}')
    for (p, sm) in ((PA, SMA), (PB, SMB)):
        a(f'v_cvt_pk_bf16_f32 v{p}, v{sm}, v{sm+1}'); a(f'v_mov_b32 v{p+1}, 0'); a(f'v_mov_b32 v{p+2}, 0'); a(f'v_cvt_pk_bf16_f32 v{p+3}, v{sm}, v{sm+1}')
    sums = []
    for (m, vals) in ((MA, va), (MB, vb)):
        sums.append(f'v_add_f32 v{m}, v{vals[0]}, v{vals[1]}')
        for x in vals[2:]: sums.append(f'v_add_f32 v{m}, v{m}, v{x}')
    for Tt in range(8):
        for mt, bt in ((0, BA), (1, BB)):
            a(f'v_mfma_f32_16x16x32_bf16 {vr(O+32*mt+4*Tt,4)}, {vr(VF+4*Tt,4)}, {vr(bt,4)}, 0')
            if sums: a(sums.pop(0))
    xred('v_add_f32', [MA, MB])
    a(f'v_rcp_f32 v{MA}, v{MA}'); a(f'v_rcp_f32 v{MB}, v{MB}')
    for mt, pm in ((0, PA), (1, PB)):
        for Tt in range(8):
            d = vr(O + 32 * mt + 4 * Tt, 4)
            a(f'v_mfma_f32_16x16x16_bf16 {d}, {vr(VM+2*(Tt>>1),2)}, {vr(pm+2*(Tt&1),2)}, {d}')
    a('s_add_u32 s53, s51, s50'); a(f's_add_u32 s53, s53, {OG}'); a('s_add_u32 s55, s53, 131072')
    for mt, m in ((0, MA), (1, MB)):
        for f in range(4):
            b = O + 32 * mt + 8 * f
            for r in range(8): a(f'v_mul_f32 v{b+r}, v{b+r}, v{m}')
            for r in range(4): a(f'v_cvt_pk_bf16_f32 v{b+r}, v{b+r}, v{b+4+r}')
            a(f'buffer_store_dwordx4 {vr(b,4)}, v{L16}, s[12:15], s{55 if mt else 53} offen offset:{f*1024} sc1')
    a('s_lshl_b32 s53, s46, 7'); a(f's_add_u32 s53, s53, {FLG + 32*128}')
    a(f'v_mov_b32 v{VT0}, 0'); a(f'v_mov_b32 v{VT0+1}, 1')
    a('s_waitcnt vmcnt(0)')
    a('s_mov_b64 exec, 1')
    a(f'buffer_atomic_add v{VT0+1}, v{VT0}, s[12:15], s53 offen')
    a('s_mov_b64 exec, -1')
    a('s_add_u32 s46, s46, 7'); a('s_cmp_lt_u32 s46, 64'); a('s_cbranch_scc1 LA_loop')

def gen_proj_load(a):
    a('s_load_dwordx2 s[20:21], s[0:1], 40'); a('s_load_dwordx2 s[22:23], s[0:1], 80'); a('s_load_dwordx2 s[24:25], s[0:1], 96')
    a(f's_mul_i32 s33, s{SW}, {9*4096}')
    set_vtr(a, 33, 4)
    lane_rows(a, 12, 4, 'r16', 1280)
    a('s_waitcnt lgkmcnt(0)')
    a.srd(36, 20, 5242880); a.srd(40, 22, 2211840); a.srd(16, 24, 2621440)
    a(f's_lshl_b32 s34, s47, 6'); a(f's_mul_i32 s44, s{SW}, {1024*1280}'); a('s_add_u32 s44, s44, s34')
    a(f's_mul_i32 s45, s{SW}, {448*1280}'); a('s_add_u32 s45, s45, s34')
    a('s_barrier')
    units = []
    for n in range(23):
        j = n if n < 7 else n - 7
        loc = wreg(16 + n, 7) if n < 7 else wreg(n - 7, 7)
        units.append((40 if n < 7 else 36, 45 if n < 7 else 44, [(64 * j + 32 * (i >> 1) + 2 * (i & 1)) * 1280 for i in range(4)], 12, loc))
    load_units(a, units, 9, 33, 'pw', toff=8)
    a('s_waitcnt vmcnt(0) lgkmcnt(0)'); a('s_barrier')

def gen_proj(a, fail):
    AA, AB, RING, NR = 16, 32, 48, 24
    GV, VO, VLW = 12, 14, 15
    a(f'v_bfe_u32 v{VT0+6}, v{L16}, 4, 4'); a(f'v_mul_u32_u24 v{VO}, 1280, v{VT0+6}'); a(f'v_lshrrev_b32 v{VT0+7}, 8, v{L16}'); a(f'v_lshl_add_u32 v{VO}, v{VT0+7}, 4, v{VO}')
    a(f'v_lshlrev_b32 v{VXS}, 2, v{VT0+6}')
    a(f's_lshl_b32 s34, s{SW}, 12'); a(f'v_add_u32 v{VLW}, s34, v{L16}')
    a(f's_lshl_b32 s34, s{SW}, 11'); a(f'v_add_u32 v{VXR}, s34, v{L16}')
    a(f's_mul_i32 s48, s{SW}, {14*1024}'); a(f's_add_u32 s48, s48, {HG}')
    a(f's_lshl_b32 s49, s{SW}, 15'); a(f's_add_u32 s49, s49, {OG}')
    a(f's_mul_i32 s50, s{SW}, 20480'); a('s_lshl_b32 s34, s47, 6'); a('s_add_u32 s50, s50, s34')
    def gemm(nks, base_s, mtstride, acc, wloc, tag):
        nf = 2 * nks
        def ld(n):
            ks, mt = n >> 1, n & 1
            if (ks & 3) == 0: a(f's_add_u32 s{56+mt}, s{base_s}, {mt*mtstride + ks*1024}')
            a(f'buffer_load_dwordx4 {vr(RING+4*(n % NR),4)}, v{L16}, s[12:15], s{56+mt} offen offset:{(ks&3)*1024} sc1')
        for n in range(min(NR, nf)): ld(n)
        for n in range(nf):
            ks, mt = n >> 1, n & 1
            k, b = wloc(ks >> 1)
            for t in range(2):
                c = vr(acc + 8 * mt + 4 * t, 4)
                a(f'v_mfma_f32_16x16x32_bf16 {c}, {k}[{b+8*t+4*(ks&1)}:{b+8*t+4*(ks&1)+3}], {vr(RING+4*(n % NR),4)}, {"0" if ks == 0 else c}')
            if n + NR < nf: ld(n + NR)
    a.label('LP_loop')
    a('s_lshl_b32 s51, s46, 17'); a('s_add_u32 s51, s51, s48')
    a('s_lshl_b32 s52, s46, 18'); a('s_add_u32 s52, s52, s49')
    a('s_lshl_b32 s53, s46, 7'); a(f's_add_u32 s54, s53, {GG}'); a(f's_add_u32 s53, s53, {FLG + 32*128}')
    a(f'buffer_load_dword v{GV}, v{VXS}, s[12:15], s54 offen sc1')
    a(f'buffer_load_dword v{GV+1}, v{VXS}, s[12:15], s54 offen offset:64 sc1')
    gemm(14, 51, 65536, AB, lambda j: wreg(16 + j, 7), 'h')
    for mt in range(2):
        a(f'v_sub_f32 v{VT0+6}, 1.0, v{GV+mt}')
        for r in range(8): a(f'v_mul_f32 v{AB+8*mt+r}, v{AB+8*mt+r}, v{VT0+6}')
    def cond():
        a(f'v_readfirstlane_b32 s35, v{VT0+2}'); a('s_cmp_ge_u32 s35, 32')
    poll_ws(a, VT0, 53, cond, 'LP_p', fail)
    gemm(32, 52, 131072, AA, lambda j: wreg(j, 7), 'o')
    for mt in range(2):
        for r in range(8): a(f'v_fma_f32 v{AB+8*mt+r}, v{AA+8*mt+r}, v{GV+mt}, v{AB+8*mt+r}')
    for q in range(4): a(f'ds_write_b128 v{VLW}, {vr(AB+4*q,4)} offset:{q*1024}')
    a('s_waitcnt lgkmcnt(0)'); a('s_barrier')
    a(f's_cmp_ge_u32 s{SW}, 2'); a('s_cbranch_scc1 LP_skip')
    for w in range(4):
        for t in range(2): a(f'ds_read_b128 {vr(RING+8*w+4*t,4)}, v{VXR} offset:{w*4096 + t*1024}')
    for r in range(8):
        a(f'v_add_f32 v{RING+r}, v{RING+r}, v{RING+8+r}'); a(f'v_add_f32 v{RING+16+r}, v{RING+16+r}, v{RING+24+r}')
    for r in range(8): a(f'v_add_f32 v{RING+r}, v{RING+r}, v{RING+16+r}')
    for i in range(4): a(f'v_cvt_pk_bf16_f32 v{RING+32+i}, v{RING+2*i}, v{RING+2*i+1}')
    a('s_mul_i32 s34, s46, 40960'); a('s_add_u32 s34, s34, s50')
    a(f'buffer_store_dwordx4 {vr(RING+32,4)}, v{VO}, s[16:19], s34 offen')
    a.label('LP_skip')
    a('s_barrier')
    a('s_add_u32 s46, s46, 7'); a('s_cmp_lt_u32 s46, 64'); a('s_cbranch_scc1 LP_loop')

def gen_worker(a, endlab):
    gen_phase1(a)
    a(f's_lshr_b32 s46, s{SU}, 5'); a(f's_and_b32 s47, s{SU}, 31')
    a('s_cmp_ge_u32 s47, 28'); a(f's_cbranch_scc1 {endlab}')
    a('s_cmp_ge_u32 s47, 20'); a('s_cbranch_scc1 LW_attn')
    gen_proj_load(a)
    rt(a)
    wait_dbg(a, D_P1B, 896, 'LW_w1', endlab)
    rt(a)
    gen_proj(a, endlab)
    rt(a)
    a(f's_branch {endlab}')
    a.label('LW_attn')
    a('s_sub_u32 s47, s47, 20'); a('s_lshl_b32 s47, s47, 2'); a(f's_add_u32 s47, s47, s{SW}')
    wait_dbg(a, D_P1B, 896, 'LW_w2', endlab)
    rt(a)
    gen_attn(a, endlab)
    rt(a)
```

```python
import sys
from al import *
from layout import *
import worker as W
import importlib
C = importlib.import_module(sys.argv[2])
opts = sys.argv[3:]
W.RT = 'rt' in opts
a = Asm()
a('s_load_dwordx2 s[4:5], s[0:1], 104'); a('s_load_dwordx2 s[6:7], s[0:1], 112')
a('s_cmp_ge_u32 s2, 256'); a('s_cbranch_scc1 LC_end')
a('s_waitcnt lgkmcnt(0)')
a.srd(8, 4, 256); a.srd(12, 6, 0x10000000)
a('s_lshr_b32 s30, s2, 3')
a('s_and_b32 s3, s2, 7'); a(f's_cmp_lt_u32 s3, {NX}'); a('s_cbranch_scc1 L_chain')
a(f's_sub_u32 s3, s3, {NX}'); a('s_lshl_b32 s3, s3, 5'); a('s_add_u32 s30, s30, s3')
W.gen_worker(a, 'L_wend')
a.label('L_wend')
a('s_endpgm')
a.label('L_chain')
C.gen_chain(a, stamps=('stamps' in opts), exp=opts, full=True)
k = NAME + '_kernel'
open(sys.argv[1], 'w').write(kernel_wrap([(k, a.text(), 512, 256, 102)], [(k, (256,1,1), (256,1,1), 163840)]))
```

```python
import re
NAME = 'gated_mix__memory_aug_recurrent_mem_tr__glu_gated_swiglu__prompt'
HEADER = open('cdna_kernels/' + NAME + '.s.ref').read().split('; Override launch')[0]

REG_RE = re.compile(r'^(-|abs\()?([vas])(?:(\d+)|\[(\d+):(\d+)\])\)?$')
def regs_of(tok):
    tok = tok.strip()
    if tok in ('vcc',): return ['vcc']
    if tok in ('vcc_lo', 'vcc_hi'): return ['vcc']
    if tok in ('exec', 'exec_lo', 'exec_hi'): return ['exec']
    if tok == 'm0': return ['m0']
    if tok == 'scc': return []
    tok = tok.lstrip('-').replace('|', '')
    m = REG_RE.match(tok)
    if not m: return []
    k = m.group(2)
    if m.group(3) is not None: return [k + m.group(3)]
    return [k + str(i) for i in range(int(m.group(4)), int(m.group(5)) + 1)]

TRANS = ('v_exp_f32', 'v_log_f32', 'v_rcp_f32', 'v_rsq_f32', 'v_sqrt_f32', 'v_sin_f32', 'v_cos_f32', 'v_rcp_iflag_f32')
def split_ops(s):
    out, depth, cur = [], 0, ''
    for ch in s:
        if ch in '[(': depth += 1
        if ch in '])': depth -= 1
        if ch == ',' and depth == 0: out.append(cur.strip()); cur = ''
        else: cur += ch
    if cur.strip(): out.append(cur.strip())
    return out

class I:
    __slots__ = ('text', 'kind', 'op', 'w', 'r', 'A', 'B', 'C', 'passes', 'target', 'tok', 'wide', 'dpp', 'nop', 'extra', 'data')
    def __init__(self, text, tok=None):
        self.text = text; self.tok = tok
        self.w, self.r, self.A, self.B, self.C, self.data = [], [], [], [], [], []
        self.passes = 0; self.target = None; self.wide = False; self.dpp = False; self.nop = 1; self.extra = None
        t = text.split(';')[0].strip()
        if t.endswith(':'):
            self.kind = 'label'; self.op = t[:-1]; return
        if not t or t.startswith('.'):
            self.kind = 'none'; self.op = ''; return
        sp = t.split(None, 1)
        op = sp[0]; self.op = op
        rest = sp[1] if len(sp) > 1 else ''
        ops = split_ops(rest)
        mods = ''
        if ops:
            parts = ops[-1].split()
            ops[-1] = parts[0]; mods = ' '.join(parts[1:])
        R = [regs_of(o) for o in ops]
        flat = lambda L: [x for y in L for x in y]
        if op.startswith('v_mfma') or op.startswith('v_smfmac'):
            self.kind = 'mfma'
            self.passes = 8 if '32x32' in op else 4
            self.w = R[0]; self.A = R[1]; self.B = R[2]
            if op.startswith('v_smfmac'):
                self.C = R[0]; self.A = R[1] + R[3]
            else: self.C = R[3]
            self.r = self.A + self.B + self.C
        elif op.startswith('v_'):
            self.kind = 'valu'
            self.dpp = '_dpp' in op or 'quad_perm' in mods or 'row_' in mods
            if 'swap' in op:
                self.w = R[0] + R[1]; self.r = R[0] + R[1]
            elif op.startswith('v_cmp'):
                self.w = R[0]; self.r = flat(R[1:])
            elif op.startswith(('v_add_co', 'v_sub_co', 'v_addc_co', 'v_subb_co', 'v_mad_u64')):
                self.w = R[0] + R[1]; self.r = flat(R[2:])
            else:
                self.w = R[0]; self.r = flat(R[1:])
                if op.startswith(('v_fmac', 'v_dot2c', 'v_pk_fmac', 'v_writelane')) or self.dpp: self.r = self.r + R[0]
        elif op.startswith('buffer_') or op.startswith('global_'):
            self.kind = 'vmem'
            allmods = mods.split()
            if op.startswith(('buffer_wbl2', 'buffer_inv')):
                pass
            elif 'lds' in allmods or '_lds_' in op:
                self.r = flat(R) + ['m0']; self.extra = 'ldsdma'
            elif '_load' in op:
                self.w = R[0]; self.r = flat(R[1:])
            elif '_store' in op:
                self.r = flat(R); self.wide = op.endswith(('x3', 'x4'))
                self.data = R[0] if op.startswith('buffer_') else R[1]
            elif '_atomic' in op:
                self.r = flat(R)
                if 'sc0' in allmods: self.w = R[0]
            else: raise ValueError(text)
        elif op.startswith('ds_'):
            self.kind = 'ds'
            if op.startswith(('ds_read', 'ds_bpermute', 'ds_permute', 'ds_swizzle')):
                self.w = R[0]; self.r = flat(R[1:])
            elif op.startswith('ds_write') or op.startswith('ds_add') or op.startswith('ds_max') or op.startswith('ds_or'):
                if '_rtn' in op: self.w = R[0]; self.r = flat(R[1:])
                else: self.r = flat(R)
            else: raise ValueError(text)
        elif op.startswith(('s_load', 's_memtime', 's_memrealtime', 's_buffer_load')):
            self.kind = 'smem'; self.w = R[0]; self.r = flat(R[1:])
        elif op == 's_waitcnt':
            self.kind = 'wait'
            m = re.search(r'vmcnt\((\d+)\)', t); l = re.search(r'lgkmcnt\((\d+)\)', t)
            self.extra = (int(m.group(1)) if m else None, int(l.group(1)) if l else None)
        elif op == 's_nop':
            self.kind = 'nop'; self.nop = int(ops[0], 0) + 1
        elif op.startswith(('s_branch', 's_cbranch')):
            self.kind = 'branch'; self.target = ops[0]
            if 'vcc' in op: self.r = ['vcc']
        elif op in ('s_endpgm',):
            self.kind = 'end'
        elif op.startswith('s_'):
            self.kind = 'salu'
            if op.startswith(('s_cmp', 's_barrier', 's_sleep', 's_setprio', 's_bitcmp', 's_setreg')):
                self.r = flat(R)
            else:
                self.w = R[0] if R else []; self.r = flat(R[1:])
                if 'saveexec' in op: self.w = self.w + ['exec']
        else:
            raise ValueError('unknown instr: ' + text)

class State:
    def __init__(self):
        self.vm = {}; self.lg = {}; self.smem = set(); self.hz = {}
    def copy(self):
        s = State(); s.vm = dict(self.vm); s.lg = dict(self.lg); s.smem = set(self.smem); s.hz = dict(self.hz); return s
    def merge(self, o):
        ch = False
        for mine, other in ((self.vm, o.vm), (self.lg, o.lg), (self.hz, o.hz)):
            for k, v in other.items():
                if k not in mine or v < mine[k]: mine[k] = v; ch = True
        if not o.smem <= self.smem: self.smem |= o.smem; ch = True
        return ch
    def advance(self, n):
        self.hz = {k: v + n for k, v in self.hz.items() if v + n < 24}

class Asm:
    def __init__(self):
        self.ins = []; self.nlabel = 0
    def __call__(self, s, tok=None):
        for l in s.strip('\n').split('\n'):
            l = l.strip()
            if l: self.ins.append(I(l, tok))
    def label(self, name): self.ins.append(I(name + ':'))
    def newlabel(self, base='L'):
        self.nlabel += 1; return f'{base}_{self.nlabel}'
    def comment(self, s): self.ins.append(I('; ' + s))
    def wait_tok(self, *toks):
        i = I('; wait ' + ' '.join(toks)); i.kind = 'waittok'; i.extra = toks; self.ins.append(i)
    def srd(self, d, base, nbytes):
        self(f's_mov_b32 s{d}, s{base}'); self(f's_mov_b32 s{d+1}, s{base+1}')
        self(f's_mov_b32 s{d+2}, {nbytes:#x}'); self(f's_mov_b32 s{d+3}, 0x00020000')

    def _need(self, st, i):
        vmw = lgw = None
        touched = i.r + i.w
        if i.kind == 'waittok': touched = list(i.extra)
        for r in touched:
            waw = r in i.w and r not in i.r
            if r in st.vm and not (waw and i.kind == 'vmem'): vmw = st.vm[r] if vmw is None else min(vmw, st.vm[r])
            if r in st.lg and not (waw and i.kind == 'ds'): lgw = st.lg[r] if lgw is None else min(lgw, st.lg[r])
            if r in st.smem: lgw = 0
        if lgw is not None and st.smem: lgw = 0
        if vmw is not None: vmw = min(vmw, 63)
        if lgw is not None: lgw = min(lgw, 15)
        need = 0
        def req(key, n):
            nonlocal need
            if key in st.hz: need = max(need, n - st.hz[key])
        k = i.kind
        if k == 'mfma':
            for r in i.r: req(('valu', r), 2)
            for r in i.A + i.B:
                req(('x4', r), 8); req(('x8', r), 12)
            sig = (i.passes, tuple(i.C))
            for r in i.C:
                if ('xs', sig) in st.hz and (('x4' if i.passes == 4 else 'x8'), r) in st.hz and st.hz[('xs', sig)] == st.hz[(('x4' if i.passes == 4 else 'x8'), r)]:
                    req(('x8' if i.passes == 4 else 'x4', r), 10 if i.passes == 4 else 6)
                else:
                    req(('x4', r), 6); req(('x8', r), 10)
            for r in i.w:
                if r not in i.C: req(('x4', r), 8); req(('x8', r), 12)
            req(('vexec', 'exec'), 4)
        if k in ('valu', 'vmem', 'ds'):
            for r in i.r + i.w:
                req(('x4', r), 8); req(('x8', r), 12)
        if k == 'valu':
            for r in i.w:
                req(('c4', r), 3); req(('c8', r), 7); req(('wstore', r), 2)
            for r in i.r:
                if i.dpp or i.op.startswith('v_permlane'): req(('valu', r), 2)
                if i.op.startswith(('v_readlane', 'v_readfirstlane')): req(('valu', r), 1)
                if not i.op.startswith(TRANS): req(('trans', r), 1)
                if r[0] == 's' or r == 'vcc': req(('vsgpr', r), 4 if i.op.startswith(('v_readlane', 'v_writelane')) else 2)
        if k in ('vmem', 'ds'):
            for r in i.w: req(('wstore', r), 1)
            for r in i.r:
                if r[0] == 's' or r == 'vcc': req(('vsgpr', r), 5)
                req(('trans', r), 1)
            if i.extra == 'ldsdma': req(('m0', 'm0'), 1)
        if k in ('salu', 'branch', 'smem'):
            for r in i.r:
                if r[0] == 's' or r == 'vcc': req(('vsgpr', r), 1)
        return vmw, lgw, need

    def _apply_wait(self, st, vm, lg):
        if vm is not None: st.vm = {k: v for k, v in st.vm.items() if v < vm}
        if lg is not None:
            st.lg = {k: v for k, v in st.lg.items() if v < lg}
            if lg == 0: st.smem = set()

    def _issue(self, st, i):
        k = i.kind
        if k == 'mfma':
            if self.lastm is not None and self.lastm < 3: st.advance(3 - self.lastm)
            self.lastm = -1
        if self.lastm is not None: self.lastm += i.nop
        st.advance(i.nop)
        if k == 'vmem':
            st.vm = {a: b + 1 for a, b in st.vm.items()}
            for r in i.w: st.vm[r] = 0
            if i.tok: st.vm[i.tok] = 0
            if i.wide:
                for r in i.data: st.hz[('wstore', r)] = 0
        elif k == 'ds':
            st.lg = {a: b + 1 for a, b in st.lg.items()}
            for r in i.w: st.lg[r] = 0
            if i.tok: st.lg[i.tok] = 0
        elif k == 'smem':
            for r in i.w: st.smem.add(r)
        elif k == 'wait': self._apply_wait(st, *i.extra)
        elif k == 'mfma':
            for r in i.w:
                st.hz[('x4' if i.passes == 4 else 'x8', r)] = 0
                st.hz.pop(('x8' if i.passes == 4 else 'x4', r), None) if False else None
            st.hz[('xs', (i.passes, tuple(i.w)))] = 0
            for r in i.C: st.hz[('c4' if i.passes == 4 else 'c8', r)] = 0
        elif k == 'valu':
            for r in i.w:
                if r[0] in 'va' and r != 'vcc':
                    st.hz[('valu', r)] = 0
                    if i.op.startswith(TRANS): st.hz[('trans', r)] = 0
                else: st.hz[('vsgpr', r)] = 0
            if i.op.startswith('v_cmpx'): st.hz[('vexec', 'exec')] = 0
        elif k == 'salu':
            if 'm0' in i.w: st.hz[('m0', 'm0')] = 0

    def text(self):
        incoming = {}
        for it in range(12):
            out = []; st = State(); changed = False; live = True; self.lastm = None
            for i in self.ins:
                if i.kind == 'label':
                    if not live: st = State()
                    if i.op in incoming: st.merge(incoming[i.op])
                    live = True; self.lastm = None
                    out.append(i.text); continue
                if i.kind == 'none':
                    out.append('    ' + i.text); continue
                vm, lg, need = self._need(st, i)
                if vm is not None or lg is not None:
                    out.append('    s_waitcnt' + (f' vmcnt({vm})' if vm is not None else '') + (f' lgkmcnt({lg})' if lg is not None else ''))
                    self._apply_wait(st, vm, lg); st.advance(1); need -= 1
                    if self.lastm is not None: self.lastm += 1
                while need > 0:
                    n = min(need, 16); out.append(f'    s_nop {n-1}'); st.advance(n); need -= n
                    if self.lastm is not None: self.lastm += n
                if i.kind == 'waittok': continue
                out.append('    ' + i.text)
                self._issue(st, i)
                if i.kind == 'branch':
                    if i.target not in incoming: incoming[i.target] = st.copy(); changed = True
                    elif incoming[i.target].merge(st): changed = True
                    if i.op == 's_branch': live = False
                if i.kind == 'end': live = False
            if not changed: break
        else:
            raise RuntimeError('no convergence')
        return '\n'.join(out) + '\n'

def kernel_wrap(kernels, launches):
    out = HEADER
    if len(launches) == 1 and launches[0][0] == NAME + '_kernel':
        l, g, b, lds = launches[0]
        out += f'; @launch grid=({g[0]},{g[1]},{g[2]}) block=({b[0]},{b[1]},{b[2]}) lds={lds}\n'
    else:
        for l, g, b, lds in launches:
            out += f'; @launch kernel={l} grid=({g[0]},{g[1]},{g[2]}) block=({b[0]},{b[1]},{b[2]}) lds={lds}\n'
    out += '.amdgcn_target "amdgcn-amd-amdhsa--gfx950"\n.text\n'
    for label, body, vgpr, accum, sgpr in kernels:
        out += f'.globl {label}\n.p2align 8\n.type {label},@function\n{label}:\n{body}    s_endpgm\n'
    out += '.section .rodata,"a"\n'
    for label, body, vgpr, accum, sgpr in kernels:
        out += f'''.p2align 6
.amdhsa_kernel {label}
  .amdhsa_next_free_vgpr {vgpr}
  .amdhsa_next_free_sgpr {sgpr}
  .amdhsa_accum_offset {accum}
  .amdhsa_group_segment_fixed_size 0
  .amdhsa_kernarg_size 120
  .amdhsa_user_sgpr_count 2
  .amdhsa_user_sgpr_kernarg_segment_ptr 1
  .amdhsa_system_sgpr_workgroup_id_x 1
  .amdhsa_float_denorm_mode_32 3
.end_amdhsa_kernel
'''
    return out
```

```python
MB = 1 << 20
KXG = 0 * MB
VXG = 16 * MB
QXG = 32 * MB
OG  = 48 * MB
HG  = 64 * MB
GG  = 76 * MB
KVM = 80 * MB
PART = 100 * MB
PART_SLOT = 40 * 4096
MSL = 101 * MB
MSR = 106 * MB
D_SEL = 240
WST = 102 * MB
FLG = 110 * MB
D_REG, D_XCC, D_P1B, D_KVR = 252, 244, 192, 64
NX = 2
NWX = 8 - NX
NWW = NWX * 32 * 4
NWG = NWX * 32
KVROUNDS = (1, 3)
D_CLC = 208
```

```python
from al import *
from layout import *
import math, struct
def f2u(x): return struct.unpack('<I', struct.pack('<f', x))[0]
def vr(b, n): return f'v[{b}:{b+n-1}]'
LOG2E = math.log2(math.e)
SCL = (128 ** -0.5) * LOG2E
DPPM = 'row_mask:0xf bank_mask:0xf'
SW = 31
SU = 30
L16, VTR, VXS, VXR, VT0 = 0, 1, 2, 3, 4

def wreg(i, nv):
    return ('a', 16 * i) if i < 16 else ('v', 256 - 16 * nv + 16 * (i - 16))

def load_units(a, units, nslots, ringbase_s, tag, toff=32):
    def dma(n):
        srd, sb, imms, vo, _ = units[n]
        for i in range(4):
            a(f's_add_u32 s34, s{sb}, {imms[i]}')
            a(f's_add_u32 m0, s{ringbase_s}, {(n % nslots) * 4096 + i * 1024}')
            a(f'buffer_load_dwordx4 v{vo}, s[{srd}:{srd+3}], s34 offen lds', tok=f'{tag}d{n}')
    for n in range(min(nslots, len(units))): dma(n)
    for n, u in enumerate(units):
        a.wait_tok(f'{tag}d{n}')
        k, b = u[4]
        for t in range(2):
            for rp in range(4):
                a(f'ds_read_b64_tr_b16 {k}[{b+8*t+2*rp}:{b+8*t+2*rp+1}], v{VTR} offset:{(n % nslots)*4096 + rp*1024 + t*toff}', tok=f'{tag}t{n}')
        if n + nslots < len(units):
            a.wait_tok(f'{tag}t{n}')
            dma(n + nslots)

def worker_setup(a):
    a('v_lshrrev_b32 v16, 6, v0'); a(f'v_readfirstlane_b32 s{SW}, v16')
    a('v_and_b32 v17, 63, v0')
    a(f'v_lshlrev_b32 v{L16}, 4, v17')
    a('v_lshrrev_b32 v18, 4, v17'); a('v_lshlrev_b32 v18, 1, v18'); a('v_mov_b32 v19, 0x78'); a('v_lshrrev_b32 v19, v18, v19'); a('v_xor_b32 v19, v19, v17'); a('v_and_b32 v19, 3, v19')
    a('v_lshrrev_b32 v20, 2, v17'); a(f'v_mul_u32_u24 v{VXS}, 1280, v20'); a(f'v_lshl_add_u32 v{VXS}, v19, 4, v{VXS}')
    a('v_bfe_u32 v18, v17, 2, 2'); a('v_lshlrev_b32 v18, 1, v18'); a('v_mov_b32 v19, 0x78'); a('v_lshrrev_b32 v19, v18, v19'); a('v_lshrrev_b32 v21, 4, v17'); a('v_xor_b32 v19, v19, v21'); a('v_and_b32 v19, 3, v19')
    a('v_and_b32 v20, 15, v17'); a(f'v_lshlrev_b32 v{VXR}, 6, v20'); a(f'v_lshl_add_u32 v{VXR}, v19, 4, v{VXR}')

def set_vtr(a, ring_s, sh=3):
    a(f'v_lshrrev_b32 v{VT0}, 6, v{L16}'); a(f'v_lshlrev_b32 v{VT0}, 6, v{VT0}'); a(f'v_bfe_u32 v{VT0+1}, v{L16}, 4, 2')
    a(f'v_lshl_add_u32 v{VTR}, v{VT0+1}, {sh}, v{VT0}'); a(f'v_add_u32 v{VTR}, s{ring_s}, v{VTR}')

def lane_rows(a, dst, gmul, rfun, stride):
    t = VT0
    a(f'v_lshrrev_b32 v{t}, 8, v{L16}'); a(f'v_mul_u32_u24 v{t}, {gmul}, v{t}')
    a(f'v_bfe_u32 v{t+1}, v{L16}, 6, 2')
    if rfun == 'r': a(f'v_add_u32 v{t}, v{t}, v{t+1}')
    else:
        a(f'v_lshrrev_b32 v{t+2}, 1, v{t+1}'); a(f'v_add_u32 v{t}, v{t}, v{t+2}'); a(f'v_and_b32 v{t+1}, 1, v{t+1}'); a(f'v_lshl_add_u32 v{t}, v{t+1}, 4, v{t}')
    a(f's_mov_b32 s34, {stride}'); a(f'v_mul_lo_u32 v{t}, v{t}, s34'); a(f'v_bfe_u32 v{t+1}, v{L16}, 4, 2'); a(f'v_lshl_add_u32 v{dst}, v{t+1}, 4, v{t}')

XB = 40960
RT = True
RTOFF = FLG + 0x200000
def rt(a, t=VT0+6):
    if not RT: return
    a('s_memrealtime s[72:73]'); a('s_waitcnt lgkmcnt(0)')
    a(f's_lshl_b32 s74, s2, 2'); a(f's_add_u32 s74, s74, s{SW}'); a('s_lshl_b32 s74, s74, 7'); a(f's_add_u32 s74, s74, {RTOFF}')
    a('s_add_u32 s74, s74, s75'); a('s_add_u32 s75, s75, 4')
    a(f'v_mov_b32 v{t}, 0'); a(f'v_mov_b32 v{t+1}, s72')
    a(f'buffer_store_dword v{t+1}, v{t}, s[12:15], s74 offen')
def gen_gemm1(a, kind, P):
    stride = 3456 if kind == 'h' else 8192
    ostride = {'kq': 262144, 'v': 262144, 'h': 131072}[kind]
    WO = 12
    XA = 13
    ACC = 16
    XF = 48
    OUT = 80
    a(f's_mul_i32 s33, s{SW}, {7*4096}'); a(f's_add_u32 s33, s33, {XB}')
    set_vtr(a, 33)
    lane_rows(a, WO, 8, 'r', stride)
    a(f's_mul_i32 s50, s{SW}, 10240')
    a(f's_mul_i32 s51, s{SW}, 320')
    def xdma(n, buf_s, tile_s, tok):
        return [f's_add_u32 s34, s{tile_s}, {(n >> 1) * 64 + (n & 1) * 20480}', f's_add_u32 m0, s{buf_s}, {n * 1024}',
                (f'buffer_load_dwordx4 v{VXS}, s[16:19], s34 offen lds', tok)]
    def emit(p):
        if isinstance(p, tuple): a(p[0], tok=p[1])
        else: a(p)
    a(f's_mul_i32 s52, s46, 40960'); a('s_add_u32 s52, s52, s51'); a('s_mul_i32 s54, s47, 40960'); a('s_mov_b32 s53, s50')
    a('s_barrier')
    for n in range(10):
        for p in xdma(n, 53, 52, f'{P}x'): emit(p)
    units = []
    for j in range(10):
        for pr in range(2):
            units.append((36 + 4 * pr, 44 + pr, [(64 * j + 32 * (i >> 1) + 4 * (i & 1)) * stride for i in range(4)], WO, wreg(2 * j + pr, 4)))
    load_units(a, units, 7, 33, P + 'w')
    a('s_waitcnt vmcnt(0) lgkmcnt(0)'); a('s_barrier')
    rt(a)
    a('s_add_u32 s52, s52, s54'); a(f's_add_u32 s53, s50, {XB}')
    for n in range(10):
        for p in xdma(n, 53, 52, f'{P}x1'): emit(p)
    a('s_add_u32 s52, s52, s54'); a(f's_add_u32 s53, s50, {2*XB}')
    a(f's_mov_b32 s55, 0')
    a(f's_mul_i32 s56, s46, {ostride}'); a('s_add_u32 s56, s56, s48'); a(f's_mul_i32 s57, s47, {ostride}')
    a.label(f'{P}_tile')
    a(f'v_add_u32 v{XA}, s55, v{VXR}')
    side = []
    for n in range(10): side += [xdma(n, 53, 52, f'{P}xn')]
    def rdx(ks):
        for mt in range(2): a(f'ds_read_b128 {vr(XF + 8*(ks % 4) + 4*mt, 4)}, v{XA} offset:{(2*ks+mt)*1024}')
    rdx(0); rdx(1); rdx(2)
    for ks in range(20):
        j, kh = ks >> 1, ks & 1
        n = 0
        for pr in range(2):
            k, b = wreg(2 * j + pr, 4)
            for t in range(2):
                Wf = f'{k}[{b+8*t+4*kh}:{b+8*t+4*kh+3}]'
                for mt in range(2):
                    c = vr(ACC + 16 * mt + 8 * pr + 4 * t, 4); Xf = vr(XF + 8 * (ks % 4) + 4 * mt, 4)
                    A_, B_ = (Xf, Wf) if kind == 'v' else (Wf, Xf)
                    a(f'v_mfma_f32_16x16x32_bf16 {c}, {A_}, {B_}, {"0" if ks == 0 else c}')
                    n += 1
                    if n == 1 and ks + 3 < 20: rdx(ks + 3)
                    if n == 4 and side and ks >= 1:
                        for p in side.pop(0): emit(p)
    if kind == 'kq':
        for mt in range(2):
            for pr in range(2):
                o = OUT + 8 * mt + 4 * pr; b = ACC + 16 * mt + 8 * pr
                for r in range(4): a(f'v_cvt_pk_bf16_f32 v{o+r}, v{b+r}, v{b+4+r}')
                if mt == 1 and pr == 0: a('s_add_u32 s35, s56, 4096')
                a(f'buffer_store_dwordx4 {vr(o,4)}, v{L16}, s[12:15], s{35 if mt else 56} offen offset:{pr*1024} sc1')
    elif kind == 'v':
        for T in range(4):
            o = OUT + 4 * T
            for mt in range(2):
                b = ACC + 16 * mt + 4 * T
                a(f'v_cvt_pk_bf16_f32 v{o+2*mt}, v{b}, v{b+1}'); a(f'v_cvt_pk_bf16_f32 v{o+2*mt+1}, v{b+2}, v{b+3}')
            a(f'buffer_store_dwordx4 {vr(o,4)}, v{L16}, s[12:15], s56 offen offset:{T*1024} sc1')
    else:
        a(f's_mov_b32 s35, {f2u(-LOG2E):#x}')
        for mt in range(2):
            G = ACC + 16 * mt; U = G + 8; E = OUT + 8
            for r in range(8): a(f'v_mul_f32 v{E+r}, s35, v{G+r}')
            for r in range(8): a(f'v_exp_f32 v{E+r}, v{E+r}')
            for r in range(8): a(f'v_mul_f32 v{G+r}, v{G+r}, v{U+r}')
            for r in range(8): a(f'v_add_f32 v{E+r}, 1.0, v{E+r}')
            for r in range(8): a(f'v_rcp_f32 v{E+r}, v{E+r}')
            for r in range(8): a(f'v_mul_f32 v{G+r}, v{G+r}, v{E+r}')
            o = OUT + 4 * mt
            for r in range(4): a(f'v_cvt_pk_bf16_f32 v{o+r}, v{G+r}, v{G+4+r}')
            if mt == 1: a('s_add_u32 s58, s56, 65536')
            a(f'buffer_store_dwordx4 {vr(o,4)}, v{L16}, s[12:15], s{58 if mt else 56} offen sc1')
    nst = 2 if kind == 'h' else 4
    a('s_add_u32 s46, s46, s47'); a('s_add_u32 s52, s52, s54'); a('s_add_u32 s56, s56, s57')
    a(f's_add_u32 s53, s55, s50')
    a(f's_add_u32 s55, s55, {XB}'); a(f's_cmp_eq_u32 s55, {3*XB}'); a('s_cselect_b32 s55, 0, s55')
    a(f's_waitcnt vmcnt({10 + nst})')
    if kind != 'h':
        a('s_add_u32 s59, s59, 1'); a('s_cmp_lg_u32 s59, 5'); a(f's_cbranch_scc1 {P}_nosig')
        signal(a, D_KV0)
        a(f's_waitcnt vmcnt(0)')
        a.label(f'{P}_nosig')
    a('s_barrier')
    a('s_cmp_lt_u32 s46, 64'); a(f's_cbranch_scc1 {P}_tile')
    a('s_waitcnt vmcnt(0)')

def signal(a, off):
    a(f'v_mov_b32 v{VT0}, {off}'); a(f'v_mov_b32 v{VT0+1}, 1')
    a('s_mov_b64 exec, 1')
    a(f'buffer_atomic_add v{VT0+1}, v{VT0}, s[8:11], 0 offen')
    a('s_mov_b64 exec, -1')

def wait_dbg(a, off, target, lab, fail, t=VT0):
    a(f'v_mov_b32 v{t}, {off}'); a('s_mov_b32 s34, 0')
    a.label(lab)
    a(f'buffer_load_dword v{t+1}, v{t}, s[8:11], 0 offen sc1')
    a('s_add_u32 s34, s34, 1'); a('s_cmp_gt_u32 s34, 2000000'); a(f's_cbranch_scc1 {fail}')
    a(f'v_readfirstlane_b32 s35, v{t+1}'); a(f's_cmp_ge_u32 s35, {target}'); a(f's_cbranch_scc1 {lab}_ok')
    a('s_sleep 8'); a(f's_branch {lab}')
    a.label(lab + '_ok')

def gen_gate(a, nwaves):
    GW, XF, D = 16, 96, 176
    a(f'v_lshrrev_b32 v{VT0}, 8, v{L16}'); a(f'v_lshlrev_b32 v{VT0}, 4, v{VT0}')
    for ks in range(20): a(f'buffer_load_dwordx4 {vr(GW+4*ks,4)}, v{VT0}, s[36:39], 0 offen offset:{64*ks}')
    a(f'v_bfe_u32 v{VT0+1}, v{L16}, 4, 4'); a(f'v_mul_u32_u24 v{VT0+2}, 1280, v{VT0+1}'); a(f'v_add_u32 v{VT0+2}, v{VT0+2}, v{VT0}')
    a(f'v_lshlrev_b32 v{VT0+3}, 2, v{VT0+1}')
    a(f's_mov_b32 s35, {f2u(-LOG2E):#x}')
    a.label('LG_loop')
    a('s_mul_i32 s50, s46, 20480'); a('s_lshl_b32 s51, s46, 6'); a(f's_add_u32 s51, s51, {GG}')
    for ks in range(20): a(f'buffer_load_dwordx4 {vr(XF+4*ks,4)}, v{VT0+2}, s[16:19], s50 offen offset:{64*ks}')
    for ks in range(20): a(f'v_mfma_f32_16x16x32_bf16 {vr(D,4)}, {vr(GW+4*ks,4)}, {vr(XF+4*ks,4)}, {"0" if ks == 0 else vr(D,4)}')
    a(f'v_mul_f32 v{D}, s35, v{D}'); a(f'v_exp_f32 v{D}, v{D}'); a(f'v_add_f32 v{D}, 1.0, v{D}'); a(f'v_rcp_f32 v{D}, v{D}')
    a('s_mov_b64 exec, 0xffff')
    a(f'buffer_store_dword v{D}, v{VT0+3}, s[12:15], s51 offen sc1')
    a('s_mov_b64 exec, -1')
    a(f's_add_u32 s46, s46, {nwaves}'); a('s_cmp_lt_u32 s46, 128'); a('s_cbranch_scc1 LG_loop')
    a('s_waitcnt vmcnt(0)')

def gen_phase1(a):
    a('s_load_dwordx2 s[20:21], s[0:1], 0')
    a('s_load_dwordx4 s[24:27], s[0:1], 24')
    a('s_load_dwordx2 s[22:23], s[0:1], 16')
    a('s_load_dwordx4 s[60:63], s[0:1], 64')
    a('s_load_dwordx2 s[64:65], s[0:1], 88')
    worker_setup(a)
    a('s_mov_b32 s75, 0'); rt(a)
    a(f'v_mov_b32 v{VT0}, 0'); a(f'v_lshrrev_b32 v{VT0+1}, 2, v{L16}')
    a(f's_lshl_b32 s34, s{SU}, 7'); a(f's_add_u32 s34, s34, {FLG}')
    a('s_mov_b64 exec, 0xffffffff')
    a(f'buffer_store_dword v{VT0}, v{VT0+1}, s[12:15], s34 offen sc1')
    a('s_mov_b64 exec, -1')
    a('s_waitcnt lgkmcnt(0)')
    a.srd(16, 20, 2621440)
    a(f's_mul_i32 s66, s{SU}, {65536 // NWX + 1}'); a('s_lshr_b32 s66, s66, 16'); a(f's_mul_i32 s34, s66, {NWX}'); a(f's_sub_u32 s67, s{SU}, s34')
    a('s_mov_b32 s46, s67'); a(f's_mov_b32 s47, {NWX}')
    a('s_and_b32 s68, s66, 15'); a('s_lshl_b32 s44, s68, 9'); a(f's_lshl_b32 s34, s{SW}, 7'); a('s_add_u32 s44, s44, s34'); a('s_add_u32 s45, s44, 64')
    a('s_lshl_b32 s69, s68, 14'); a(f's_lshr_b32 s34, s{SW}, 1'); a('s_lshl_b32 s34, s34, 13'); a('s_add_u32 s69, s69, s34')
    a(f's_and_b32 s70, s{SW}, 1'); a('s_mov_b32 s59, 0')
    a('s_cmp_ge_u32 s66, 16'); a('s_cbranch_scc1 LW_v')
    a.srd(36, 24, 5242880); a.srd(40, 24, 5242880)
    a('s_lshl_b32 s48, s70, 11'); a('s_add_u32 s48, s48, s69'); a(f's_add_u32 s48, s48, {KXG}')
    a('s_mov_b32 s71, 0')
    a.label('LW_kq')
    gen_gemm1(a, 'kq', 'LK')
    a('s_cmp_eq_u32 s71, 1'); a('s_cbranch_scc1 LW_p1b_done')
    a('s_branch LW_p1a_done')
    a.label('LW_v')
    a.srd(36, 26, 5242880); a.srd(40, 26, 5242880)
    a('s_lshl_b32 s48, s70, 12'); a('s_add_u32 s48, s48, s69'); a(f's_add_u32 s48, s48, {VXG}')
    gen_gemm1(a, 'v', 'LV')
    a.label('LW_p1a_done')
    signal(a, D_KV)
    rt(a)
    a('s_mov_b32 s46, s67'); a(f's_mov_b32 s47, {NWX}')
    a('s_cmp_ge_u32 s66, 16'); a('s_cbranch_scc1 LW_h')
    a.srd(36, 22, 5242880); a.srd(40, 22, 5242880)
    a('s_lshl_b32 s48, s70, 11'); a('s_add_u32 s48, s48, s69'); a(f's_add_u32 s48, s48, {QXG}')
    a('s_mov_b32 s71, 1')
    a('s_branch LW_kq')
    a.label('LW_h')
    a('s_cmp_ge_u32 s66, 30'); a('s_cbranch_scc1 LW_gate')
    a.srd(36, 60, 2211840); a.srd(40, 62, 2211840)
    a('s_lshl_b32 s34, s68, 2'); a(f's_add_u32 s34, s34, s{SW}')
    a('s_min_u32 s35, s34, 53'); a('s_lshl_b32 s44, s35, 6'); a('s_mov_b32 s45, s44')
    a('s_lshl_b32 s48, s34, 10'); a(f's_add_u32 s48, s48, {HG}')
    gen_gemm1(a, 'h', 'LH')
    a('s_branch LW_p1b_done')
    a.label('LW_gate')
    a.srd(36, 64, 1280)
    a(f's_sub_u32 s46, s{SU}, {30*NWX}'); a('s_lshl_b32 s46, s46, 2'); a(f's_add_u32 s46, s46, s{SW}')
    gen_gate(a, 8 * NWX)
    a.label('LW_p1b_done')
    signal(a, D_P1B)
    rt(a)


def poll_ws(a, t, soff, cond_fn, lab, fail, width=1, sleep=4):
    a(f'v_and_b32 v{t}, {0 if width == 1 else 16}, v{L16}'); a('s_mov_b32 s34, 0')
    a.label(lab)
    if width == 1: a(f'buffer_load_dword v{t+2}, v{t}, s[12:15], s{soff} offen sc1')
    else: a(f'buffer_load_dwordx4 {vr(t+2,4)}, v{t}, s[12:15], s{soff} offen sc1')
    a('s_add_u32 s34, s34, 1'); a('s_cmp_gt_u32 s34, 4000000'); a(f's_cbranch_scc1 {fail}')
    cond_fn()
    a(f's_cbranch_scc1 {lab}_ok')
    a(f's_sleep {sleep}'); a(f's_branch {lab}')
    a.label(lab + '_ok')

def gen_attn(a, fail):
    QF, KF, VF, KM, VM, SS, O, T = 16, 48, 80, 112, 128, 136, 160, 224
    SAA, SAB, SBB, SMA, SMB = SS, SS + 4, SS + 8, SS + 12, SS + 16
    a(f's_mov_b32 s54, {f2u(SCL):#x}')
    a(f'v_bfe_u32 v{T}, v{L16}, 4, 4'); a(f'v_lshrrev_b32 v{T+1}, 8, v{L16}'); a(f'v_lshlrev_b32 v{T+1}, 2, v{T+1}')
    for r in range(4):
        a(f'v_add_u32 v{T+2}, {r}, v{T+1}'); a(f'v_cmp_le_u32 s[{76+2*r}:{77+2*r}], v{T+2}, v{T}')
    a(f'v_mov_b32 v{VT0+8}, 0xff800000'); a(f'v_lshrrev_b32 v{VT0+9}, 1, v{L16}')
    NEG, L8 = VT0 + 8, VT0 + 9
    a('s_lshl_b32 s48, s47, 13'); a('s_lshl_b32 s49, s47, 7'); a(f's_add_u32 s49, s49, {FLG}'); a('s_lshl_b32 s50, s47, 12')
    a.label('LA_loop')
    a('s_lshl_b32 s51, s46, 18'); a('s_add_u32 s52, s51, s48')
    for nm, base, off in (('q', QF, QXG), ('k', KF, KXG), ('v', VF, VXG)):
        a(f's_add_u32 s53, s52, {off}'); a(f's_add_u32 s55, s53, 4096')
        for i in range(8): a(f'buffer_load_dwordx4 {vr(base+4*i,4)}, v{L16}, s[12:15], s{53 if i < 4 else 55} offen offset:{(i&3)*1024} sc1')
    for (d, kt, qt) in ((SAA, 0, 0), (SAB, 0, 1), (SBB, 1, 1)):
        for f in range(4): a(f'v_mfma_f32_16x16x32_bf16 {vr(d,4)}, {vr(KF+16*kt+4*f,4)}, {vr(QF+16*qt+4*f,4)}, {"0" if f == 0 else vr(d,4)}')
    for d in (SAA, SBB):
        for r in range(4): a(f'v_cndmask_b32 v{d+r}, v{NEG}, v{d+r}, s[{76+2*r}:{77+2*r}]')
    MA, MB, M2 = T, T + 1, T + 2
    a(f'v_max3_f32 v{MA}, v{SAA}, v{SAA+1}, v{SAA+2}'); a(f'v_max_f32 v{MA}, v{MA}, v{SAA+3}')
    a(f'v_max3_f32 v{MB}, v{SAB}, v{SAB+1}, v{SAB+2}'); a(f'v_max3_f32 v{MB}, v{MB}, v{SAB+3}, v{SBB}'); a(f'v_max3_f32 v{MB}, v{MB}, v{SBB+1}, v{SBB+2}'); a(f'v_max_f32 v{MB}, v{MB}, v{SBB+3}')
    def cond():
        a(f'v_min3_u32 v{VT0+2}, v{VT0+2}, v{VT0+3}, v{VT0+4}'); a(f'v_min_u32 v{VT0+2}, v{VT0+2}, v{VT0+5}')
        a(f'v_readlane_b32 s35, v{VT0+2}, 0'); a(f'v_readlane_b32 s56, v{VT0+2}, 1'); a('s_min_u32 s35, s35, s56'); a('s_cmp_gt_u32 s35, s46')
    poll_ws(a, VT0, 49, cond, 'LA_p', fail, width=4)
    a(f's_add_u32 s53, s52, {KVM}'); a('s_add_u32 s55, s53, 4096')
    for f in range(4): a(f'buffer_load_dwordx4 {vr(KM+4*f,4)}, v{L16}, s[12:15], s53 offen offset:{f*1024} sc1')
    for w in range(4): a(f'buffer_load_dwordx2 {vr(VM+2*w,2)}, v{L8}, s[12:15], s55 offen offset:{w*512} sc1')
    for f in range(4):
        for (d, qt) in ((SMA, 0), (SMB, 1)):
            a(f'v_mfma_f32_16x16x32_bf16 {vr(d,4)}, {vr(KM+4*f,4)}, {vr(QF+16*qt+4*f,4)}, {"0" if f == 0 else vr(d,4)}')
    a(f'v_max3_f32 v{MA}, v{MA}, v{SMA}, v{SMA+1}'); a(f'v_max3_f32 v{MB}, v{MB}, v{SMB}, v{SMB+1}')
    def xred(op, regs):
        for sw in ('v_permlane16_swap_b32', 'v_permlane32_swap_b32'):
            for i, m in enumerate(regs): a(f'v_mov_b32 v{M2+i}, v{m}')
            for i, m in enumerate(regs): a(f'{sw} v{m}, v{M2+i}')
            for i, m in enumerate(regs): a(f'{op} v{m}, v{m}, v{M2+i}')
    xred('v_max_f32', [MA, MB])
    a(f'v_mul_f32 v{MA}, s54, v{MA}'); a(f'v_mul_f32 v{MB}, s54, v{MB}')
    va = [SAA + r for r in range(4)] + [SMA, SMA + 1]
    vb = [SAB + r for r in range(8)] + [SMB, SMB + 1]
    for x in va: a(f'v_fma_f32 v{x}, v{x}, s54, -v{MA}')
    for x in vb: a(f'v_fma_f32 v{x}, v{x}, s54, -v{MB}')
    for x in va + vb: a(f'v_exp_f32 v{x}, v{x}')
    BA, BB, PA, PB = T + 8, T + 12, T + 16, T + 20
    a(f'v_cvt_pk_bf16_f32 v{BA}, v{SAA}, v{SAA+1}'); a(f'v_cvt_pk_bf16_f32 v{BA+1}, v{SAA+2}, v{SAA+3}'); a(f'v_mov_b32 v{BA+2}, 0'); a(f'v_mov_b32 v{BA+3}, 0')
    for i in range(4): a(f'v_cvt_pk_bf16_f32 v{BB+i}, v{SAB+2*i}, v{SAB+2*i+1}')
    for (p, sm) in ((PA, SMA), (PB, SMB)):
        a(f'v_cvt_pk_bf16_f32 v{p}, v{sm}, v{sm+1}'); a(f'v_mov_b32 v{p+1}, 0'); a(f'v_mov_b32 v{p+2}, 0'); a(f'v_cvt_pk_bf16_f32 v{p+3}, v{sm}, v{sm+1}')
    sums = []
    for (m, vals) in ((MA, va), (MB, vb)):
        sums.append(f'v_add_f32 v{m}, v{vals[0]}, v{vals[1]}')
        for x in vals[2:]: sums.append(f'v_add_f32 v{m}, v{m}, v{x}')
    for Tt in range(8):
        for mt, bt in ((0, BA), (1, BB)):
            a(f'v_mfma_f32_16x16x32_bf16 {vr(O+32*mt+4*Tt,4)}, {vr(VF+4*Tt,4)}, {vr(bt,4)}, 0')
            if sums: a(sums.pop(0))
    xred('v_add_f32', [MA, MB])
    a(f'v_rcp_f32 v{MA}, v{MA}'); a(f'v_rcp_f32 v{MB}, v{MB}')
    for mt, pm in ((0, PA), (1, PB)):
        for Tt in range(8):
            d = vr(O + 32 * mt + 4 * Tt, 4)
            a(f'v_mfma_f32_16x16x16_bf16 {d}, {vr(VM+2*(Tt>>1),2)}, {vr(pm+2*(Tt&1),2)}, {d}')
    a('s_add_u32 s53, s51, s50'); a(f's_add_u32 s53, s53, {OG}'); a('s_add_u32 s55, s53, 131072')
    for mt, m in ((0, MA), (1, MB)):
        for f in range(4):
            b = O + 32 * mt + 8 * f
            for r in range(8): a(f'v_mul_f32 v{b+r}, v{b+r}, v{m}')
            for r in range(4): a(f'v_cvt_pk_bf16_f32 v{b+r}, v{b+r}, v{b+4+r}')
            a(f'buffer_store_dwordx4 {vr(b,4)}, v{L16}, s[12:15], s{55 if mt else 53} offen offset:{f*1024} sc1')
    a('s_lshl_b32 s53, s46, 7'); a(f's_add_u32 s53, s53, {FLG + 32*128}')
    a(f'v_mov_b32 v{VT0}, 0'); a(f'v_mov_b32 v{VT0+1}, 1')
    a('s_waitcnt vmcnt(0)')
    a('s_mov_b64 exec, 1')
    a(f'buffer_atomic_add v{VT0+1}, v{VT0}, s[12:15], s53 offen')
    a('s_mov_b64 exec, -1')
    a(f's_add_u32 s46, s46, {NWX}'); a('s_cmp_lt_u32 s46, 64'); a('s_cbranch_scc1 LA_loop')

def gen_proj_load(a):
    a('s_load_dwordx2 s[20:21], s[0:1], 40'); a('s_load_dwordx2 s[22:23], s[0:1], 80'); a('s_load_dwordx2 s[24:25], s[0:1], 96')
    a(f's_mul_i32 s33, s{SW}, {9*4096}')
    set_vtr(a, 33, 4)
    lane_rows(a, 12, 4, 'r16', 1280)
    a('s_waitcnt lgkmcnt(0)')
    a.srd(36, 20, 5242880); a.srd(40, 22, 2211840); a.srd(16, 24, 2621440)
    a(f's_lshl_b32 s34, s47, 6'); a(f's_mul_i32 s44, s{SW}, {1024*1280}'); a('s_add_u32 s44, s44, s34')
    a(f's_mul_i32 s45, s{SW}, {448*1280}'); a('s_add_u32 s45, s45, s34')
    a('s_barrier')
    units = []
    for n in range(23):
        j = n if n < 7 else n - 7
        loc = wreg(16 + n, 7) if n < 7 else wreg(n - 7, 7)
        units.append((40 if n < 7 else 36, 45 if n < 7 else 44, [(64 * j + 32 * (i >> 1) + 2 * (i & 1)) * 1280 for i in range(4)], 12, loc))
    load_units(a, units, 9, 33, 'pw', toff=8)
    a('s_waitcnt vmcnt(0) lgkmcnt(0)'); a('s_barrier')

def gen_proj(a, fail):
    AA, AB, RING, NR = 16, 32, 48, 24
    GV, VO, VLW = 12, 14, 15
    a(f'v_bfe_u32 v{VT0+6}, v{L16}, 4, 4'); a(f'v_mul_u32_u24 v{VO}, 1280, v{VT0+6}'); a(f'v_lshrrev_b32 v{VT0+7}, 8, v{L16}'); a(f'v_lshl_add_u32 v{VO}, v{VT0+7}, 4, v{VO}')
    a(f'v_lshlrev_b32 v{VXS}, 2, v{VT0+6}')
    a(f's_lshl_b32 s34, s{SW}, 12'); a(f'v_add_u32 v{VLW}, s34, v{L16}')
    a(f's_lshl_b32 s34, s{SW}, 11'); a(f'v_add_u32 v{VXR}, s34, v{L16}')
    a(f's_mul_i32 s48, s{SW}, {14*1024}'); a(f's_add_u32 s48, s48, {HG}')
    a(f's_lshl_b32 s49, s{SW}, 15'); a(f's_add_u32 s49, s49, {OG}')
    a(f's_mul_i32 s50, s{SW}, 20480'); a('s_lshl_b32 s34, s47, 6'); a('s_add_u32 s50, s50, s34')
    def gemm(nks, base_s, mtstride, acc, wloc, tag):
        nf = 2 * nks
        def ld(n):
            ks, mt = n >> 1, n & 1
            if (ks & 3) == 0: a(f's_add_u32 s{56+mt}, s{base_s}, {mt*mtstride + ks*1024}')
            a(f'buffer_load_dwordx4 {vr(RING+4*(n % NR),4)}, v{L16}, s[12:15], s{56+mt} offen offset:{(ks&3)*1024} sc1')
        for n in range(min(NR, nf)): ld(n)
        for n in range(nf):
            ks, mt = n >> 1, n & 1
            k, b = wloc(ks >> 1)
            for t in range(2):
                c = vr(acc + 8 * mt + 4 * t, 4)
                a(f'v_mfma_f32_16x16x32_bf16 {c}, {k}[{b+8*t+4*(ks&1)}:{b+8*t+4*(ks&1)+3}], {vr(RING+4*(n % NR),4)}, {"0" if ks == 0 else c}')
            if n + NR < nf: ld(n + NR)
    a.label('LP_loop')
    a('s_lshl_b32 s51, s46, 17'); a('s_add_u32 s51, s51, s48')
    a('s_lshl_b32 s52, s46, 18'); a('s_add_u32 s52, s52, s49')
    a('s_lshl_b32 s53, s46, 7'); a(f's_add_u32 s54, s53, {GG}'); a(f's_add_u32 s53, s53, {FLG + 32*128}')
    a(f'buffer_load_dword v{GV}, v{VXS}, s[12:15], s54 offen sc1')
    a(f'buffer_load_dword v{GV+1}, v{VXS}, s[12:15], s54 offen offset:64 sc1')
    gemm(14, 51, 65536, AB, lambda j: wreg(16 + j, 7), 'h')
    for mt in range(2):
        a(f'v_sub_f32 v{VT0+6}, 1.0, v{GV+mt}')
        for r in range(8): a(f'v_mul_f32 v{AB+8*mt+r}, v{AB+8*mt+r}, v{VT0+6}')
    def cond():
        a(f'v_readfirstlane_b32 s35, v{VT0+2}'); a('s_cmp_ge_u32 s35, 32')
    poll_ws(a, VT0, 53, cond, 'LP_p', fail)
    gemm(32, 52, 131072, AA, lambda j: wreg(j, 7), 'o')
    for mt in range(2):
        for r in range(8): a(f'v_fma_f32 v{AB+8*mt+r}, v{AA+8*mt+r}, v{GV+mt}, v{AB+8*mt+r}')
    for q in range(4): a(f'ds_write_b128 v{VLW}, {vr(AB+4*q,4)} offset:{q*1024}')
    a('s_waitcnt lgkmcnt(0)'); a('s_barrier')
    a(f's_cmp_ge_u32 s{SW}, 2'); a('s_cbranch_scc1 LP_skip')
    for w in range(4):
        for t in range(2): a(f'ds_read_b128 {vr(RING+8*w+4*t,4)}, v{VXR} offset:{w*4096 + t*1024}')
    for r in range(8):
        a(f'v_add_f32 v{RING+r}, v{RING+r}, v{RING+8+r}'); a(f'v_add_f32 v{RING+16+r}, v{RING+16+r}, v{RING+24+r}')
    for r in range(8): a(f'v_add_f32 v{RING+r}, v{RING+r}, v{RING+16+r}')
    for i in range(4): a(f'v_cvt_pk_bf16_f32 v{RING+32+i}, v{RING+2*i}, v{RING+2*i+1}')
    a('s_mul_i32 s34, s46, 40960'); a('s_add_u32 s34, s34, s50')
    a(f'buffer_store_dwordx4 {vr(RING+32,4)}, v{VO}, s[16:19], s34 offen')
    a.label('LP_skip')
    a('s_barrier')
    a(f's_add_u32 s46, s46, {NWX}'); a('s_cmp_lt_u32 s46, 64'); a('s_cbranch_scc1 LP_loop')

def gen_worker(a, endlab):
    gen_phase1(a)
    a(f's_lshr_b32 s46, s{SU}, 5'); a(f's_and_b32 s47, s{SU}, 31')
    a('s_cmp_ge_u32 s47, 28'); a(f's_cbranch_scc1 {endlab}')
    a('s_cmp_ge_u32 s47, 20'); a('s_cbranch_scc1 LW_attn')
    gen_proj_load(a)
    rt(a)
    wait_dbg(a, D_P1B, NWW, 'LW_w1', endlab)
    rt(a)
    gen_proj(a, endlab)
    rt(a)
    a(f's_branch {endlab}')
    a.label('LW_attn')
    a('s_sub_u32 s47, s47, 20'); a('s_lshl_b32 s47, s47, 2'); a(f's_add_u32 s47, s47, s{SW}')
    wait_dbg(a, D_P1B, NWW, 'LW_w2', endlab)
    rt(a)
    gen_attn(a, endlab)
    rt(a)
```

```python
from al import *
from layout import *
import math, struct
def f2u(x): return struct.unpack('<I', struct.pack('<f', x))[0]
def vr(b, n): return f'v[{b}:{b+n-1}]'
LOG2E = math.log2(math.e)
SCL = (128 ** -0.5) * LOG2E
DPPM = 'row_mask:0xf bank_mask:0xf'
SW = 31
SU = 30
L16, VTR, VXS, VXR, VT0 = 0, 1, 2, 3, 4

def wreg(i, nv):
    return ('a', 16 * i) if i < 16 else ('v', 256 - 16 * nv + 16 * (i - 16))

def load_units(a, units, nslots, ringbase_s, tag, toff=32):
    def dma(n):
        srd, sb, imms, vo, _ = units[n]
        for i in range(4):
            a(f's_add_u32 s34, s{sb}, {imms[i]}')
            a(f's_add_u32 m0, s{ringbase_s}, {(n % nslots) * 4096 + i * 1024}')
            a(f'buffer_load_dwordx4 v{vo}, s[{srd}:{srd+3}], s34 offen lds', tok=f'{tag}d{n}')
    for n in range(min(nslots, len(units))): dma(n)
    for n, u in enumerate(units):
        a.wait_tok(f'{tag}d{n}')
        k, b = u[4]
        for t in range(2):
            for rp in range(4):
                a(f'ds_read_b64_tr_b16 {k}[{b+8*t+2*rp}:{b+8*t+2*rp+1}], v{VTR} offset:{(n % nslots)*4096 + rp*1024 + t*toff}', tok=f'{tag}t{n}')
        if n + nslots < len(units):
            a.wait_tok(f'{tag}t{n}')
            dma(n + nslots)

def worker_setup(a):
    a('v_lshrrev_b32 v16, 6, v0'); a(f'v_readfirstlane_b32 s{SW}, v16')
    a('v_and_b32 v17, 63, v0')
    a(f'v_lshlrev_b32 v{L16}, 4, v17')
    a('v_lshrrev_b32 v18, 4, v17'); a('v_lshlrev_b32 v18, 1, v18'); a('v_mov_b32 v19, 0x78'); a('v_lshrrev_b32 v19, v18, v19'); a('v_xor_b32 v19, v19, v17'); a('v_and_b32 v19, 3, v19')
    a('v_lshrrev_b32 v20, 2, v17'); a(f'v_mul_u32_u24 v{VXS}, 1280, v20'); a(f'v_lshl_add_u32 v{VXS}, v19, 4, v{VXS}')
    a('v_bfe_u32 v18, v17, 2, 2'); a('v_lshlrev_b32 v18, 1, v18'); a('v_mov_b32 v19, 0x78'); a('v_lshrrev_b32 v19, v18, v19'); a('v_lshrrev_b32 v21, 4, v17'); a('v_xor_b32 v19, v19, v21'); a('v_and_b32 v19, 3, v19')
    a('v_and_b32 v20, 15, v17'); a(f'v_lshlrev_b32 v{VXR}, 6, v20'); a(f'v_lshl_add_u32 v{VXR}, v19, 4, v{VXR}')

def set_vtr(a, ring_s, sh=3):
    a(f'v_lshrrev_b32 v{VT0}, 6, v{L16}'); a(f'v_lshlrev_b32 v{VT0}, 6, v{VT0}'); a(f'v_bfe_u32 v{VT0+1}, v{L16}, 4, 2')
    a(f'v_lshl_add_u32 v{VTR}, v{VT0+1}, {sh}, v{VT0}'); a(f'v_add_u32 v{VTR}, s{ring_s}, v{VTR}')

def lane_rows(a, dst, gmul, rfun, stride):
    t = VT0
    a(f'v_lshrrev_b32 v{t}, 8, v{L16}'); a(f'v_mul_u32_u24 v{t}, {gmul}, v{t}')
    a(f'v_bfe_u32 v{t+1}, v{L16}, 6, 2')
    if rfun == 'r': a(f'v_add_u32 v{t}, v{t}, v{t+1}')
    else:
        a(f'v_lshrrev_b32 v{t+2}, 1, v{t+1}'); a(f'v_add_u32 v{t}, v{t}, v{t+2}'); a(f'v_and_b32 v{t+1}, 1, v{t+1}'); a(f'v_lshl_add_u32 v{t}, v{t+1}, 4, v{t}')
    a(f's_mov_b32 s34, {stride}'); a(f'v_mul_lo_u32 v{t}, v{t}, s34'); a(f'v_bfe_u32 v{t+1}, v{L16}, 4, 2'); a(f'v_lshl_add_u32 v{dst}, v{t+1}, 4, v{t}')

XB = 40960
NROUND = -(-64 // NWX)
RT = True
RTOFF = FLG + 0x200000
def rt(a, t=VT0+6):
    if not RT: return
    a('s_memrealtime s[72:73]'); a('s_waitcnt lgkmcnt(0)')
    a(f's_lshl_b32 s74, s2, 2'); a(f's_add_u32 s74, s74, s{SW}'); a('s_lshl_b32 s74, s74, 7'); a(f's_add_u32 s74, s74, {RTOFF}')
    a('s_add_u32 s74, s74, s75'); a('s_add_u32 s75, s75, 4')
    a(f'v_mov_b32 v{t}, 0'); a(f'v_mov_b32 v{t+1}, s72')
    a(f'buffer_store_dword v{t+1}, v{t}, s[12:15], s74 offen')
def gen_gemm1(a, kind, P):
    stride = 3456 if kind == 'h' else 8192
    ostride = {'kq': 262144, 'v': 262144, 'h': 131072}[kind]
    WO = 12
    XA = 13
    ACC = 16
    XF = 48
    OUT = 80
    a(f's_mul_i32 s33, s{SW}, {7*4096}'); a(f's_add_u32 s33, s33, {XB}')
    set_vtr(a, 33)
    lane_rows(a, WO, 8, 'r', stride)
    a(f's_mul_i32 s50, s{SW}, 10240')
    a(f's_mul_i32 s51, s{SW}, 320')
    def xdma(n, buf_s, tile_s, tok):
        return [f's_add_u32 s34, s{tile_s}, {(n >> 1) * 64 + (n & 1) * 20480}', f's_add_u32 m0, s{buf_s}, {n * 1024}',
                (f'buffer_load_dwordx4 v{VXS}, s[16:19], s34 offen lds', tok)]
    def emit(p):
        if isinstance(p, tuple): a(p[0], tok=p[1])
        else: a(p)
    a(f's_mul_i32 s52, s46, 40960'); a('s_add_u32 s52, s52, s51'); a('s_mul_i32 s54, s47, 40960'); a('s_mov_b32 s53, s50')
    a('s_barrier')
    for n in range(10):
        for p in xdma(n, 53, 52, f'{P}x'): emit(p)
    units = []
    for j in range(10):
        for pr in range(2):
            units.append((36 + 4 * pr, 44 + pr, [(64 * j + 32 * (i >> 1) + 4 * (i & 1)) * stride for i in range(4)], WO, wreg(2 * j + pr, 4)))
    load_units(a, units, 7, 33, P + 'w')
    a('s_waitcnt vmcnt(0) lgkmcnt(0)'); a('s_barrier')
    rt(a)
    a('s_add_u32 s52, s52, s54'); a(f's_add_u32 s53, s50, {XB}')
    for n in range(10):
        for p in xdma(n, 53, 52, f'{P}x1'): emit(p)
    a('s_add_u32 s52, s52, s54'); a(f's_add_u32 s53, s50, {2*XB}')
    a(f's_mov_b32 s55, 0')
    a(f's_mul_i32 s56, s46, {ostride}'); a('s_add_u32 s56, s56, s48'); a(f's_mul_i32 s57, s47, {ostride}')
    a.label(f'{P}_tile')
    a(f'v_add_u32 v{XA}, s55, v{VXR}')
    side = []
    for n in range(10): side += [xdma(n, 53, 52, f'{P}xn')]
    def rdx(ks):
        for mt in range(2): a(f'ds_read_b128 {vr(XF + 8*(ks % 4) + 4*mt, 4)}, v{XA} offset:{(2*ks+mt)*1024}')
    rdx(0); rdx(1); rdx(2)
    for ks in range(20):
        j, kh = ks >> 1, ks & 1
        n = 0
        for pr in range(2):
            k, b = wreg(2 * j + pr, 4)
            for t in range(2):
                Wf = f'{k}[{b+8*t+4*kh}:{b+8*t+4*kh+3}]'
                for mt in range(2):
                    c = vr(ACC + 16 * mt + 8 * pr + 4 * t, 4); Xf = vr(XF + 8 * (ks % 4) + 4 * mt, 4)
                    A_, B_ = (Xf, Wf) if kind == 'v' else (Wf, Xf)
                    a(f'v_mfma_f32_16x16x32_bf16 {c}, {A_}, {B_}, {"0" if ks == 0 else c}')
                    n += 1
                    if n == 1 and ks + 3 < 20: rdx(ks + 3)
                    if n == 4 and side and ks >= 1:
                        for p in side.pop(0): emit(p)
    if kind == 'kq':
        for mt in range(2):
            for pr in range(2):
                o = OUT + 8 * mt + 4 * pr; b = ACC + 16 * mt + 8 * pr
                for r in range(4): a(f'v_cvt_pk_bf16_f32 v{o+r}, v{b+r}, v{b+4+r}')
                if mt == 1 and pr == 0: a('s_add_u32 s35, s56, 4096')
                a(f'buffer_store_dwordx4 {vr(o,4)}, v{L16}, s[12:15], s{35 if mt else 56} offen offset:{pr*1024} sc1')
    elif kind == 'v':
        for T in range(4):
            o = OUT + 4 * T
            for mt in range(2):
                b = ACC + 16 * mt + 4 * T
                a(f'v_cvt_pk_bf16_f32 v{o+2*mt}, v{b}, v{b+1}'); a(f'v_cvt_pk_bf16_f32 v{o+2*mt+1}, v{b+2}, v{b+3}')
            a(f'buffer_store_dwordx4 {vr(o,4)}, v{L16}, s[12:15], s56 offen offset:{T*1024} sc1')
    else:
        a(f's_mov_b32 s35, {f2u(-LOG2E):#x}')
        for mt in range(2):
            G = ACC + 16 * mt; U = G + 8; E = OUT + 8
            for r in range(8): a(f'v_mul_f32 v{E+r}, s35, v{G+r}')
            for r in range(8): a(f'v_exp_f32 v{E+r}, v{E+r}')
            for r in range(8): a(f'v_mul_f32 v{G+r}, v{G+r}, v{U+r}')
            for r in range(8): a(f'v_add_f32 v{E+r}, 1.0, v{E+r}')
            for r in range(8): a(f'v_rcp_f32 v{E+r}, v{E+r}')
            for r in range(8): a(f'v_mul_f32 v{G+r}, v{G+r}, v{E+r}')
            o = OUT + 4 * mt
            for r in range(4): a(f'v_cvt_pk_bf16_f32 v{o+r}, v{G+r}, v{G+4+r}')
            if mt == 1: a('s_add_u32 s58, s56, 65536')
            a(f'buffer_store_dwordx4 {vr(o,4)}, v{L16}, s[12:15], s{58 if mt else 56} offen sc1')
    nst = 2 if kind == 'h' else 4
    a('s_add_u32 s46, s46, s47'); a('s_add_u32 s52, s52, s54'); a('s_add_u32 s56, s56, s57')
    a(f's_add_u32 s53, s55, s50')
    a(f's_add_u32 s55, s55, {XB}'); a(f's_cmp_eq_u32 s55, {3*XB}'); a('s_cselect_b32 s55, 0, s55')
    a(f's_waitcnt vmcnt({10 + nst})')
    a('s_barrier')
    if kind != 'h':
        a('s_add_u32 s59, s59, 1')
        a(f's_cmp_lg_u32 s{SW}, 0'); a(f's_cbranch_scc1 {P}_nosig')
        a(f's_cmp_eq_u32 s59, {KVROUNDS[0]+1}'); a(f's_cselect_b32 s35, {D_KVR}, 0')
        a(f's_cmp_eq_u32 s59, {KVROUNDS[1]+1}'); a(f's_cselect_b32 s35, {D_KVR+4}, s35')
        a('s_cmp_eq_u32 s35, 0'); a(f's_cbranch_scc1 {P}_nosig')
        a(f'v_mov_b32 v{VT0}, s35'); a(f'v_mov_b32 v{VT0+1}, 1')
        a('s_mov_b64 exec, 1')
        a(f'buffer_atomic_add v{VT0+1}, v{VT0}, s[8:11], 0 offen')
        a('s_mov_b64 exec, -1')
        a.label(f'{P}_nosig')
    a('s_cmp_lt_u32 s46, 64'); a(f's_cbranch_scc1 {P}_tile')
    a('s_waitcnt vmcnt(0)')

def signal(a, off):
    lab = a.newlabel('LSG')
    a('s_barrier')
    a(f's_cmp_lg_u32 s{SW}, 0'); a(f's_cbranch_scc1 {lab}')
    a(f'v_mov_b32 v{VT0}, {off}'); a(f'v_mov_b32 v{VT0+1}, 1')
    a('s_mov_b64 exec, 1')
    a(f'buffer_atomic_add v{VT0+1}, v{VT0}, s[8:11], 0 offen')
    a('s_mov_b64 exec, -1')
    a.label(lab)

def wait_dbg(a, off, target, lab, fail, t=VT0):
    a(f's_cmp_lg_u32 s{SW}, 0'); a(f's_cbranch_scc1 {lab}_ok')
    a(f'v_mov_b32 v{t}, {off}'); a('s_mov_b32 s34, 0')
    a.label(lab)
    a(f'buffer_load_dword v{t+1}, v{t}, s[8:11], 0 offen sc1')
    a('s_add_u32 s34, s34, 1'); a('s_cmp_gt_u32 s34, 2000000'); a(f's_cbranch_scc1 {fail}')
    a(f'v_readfirstlane_b32 s35, v{t+1}'); a(f's_cmp_ge_u32 s35, {target}'); a(f's_cbranch_scc1 {lab}_ok')
    a('s_sleep 16'); a(f's_branch {lab}')
    a.label(lab + '_ok')
    a('s_barrier')

def kv_wait(a, need_s, ready_s, lab, fail, t, l16):
    a(f'v_lshrrev_b32 v{t}, 2, v{l16}'); a(f'v_min_u32 v{t}, 12, v{t}'); a('s_mov_b32 s34, 0')
    a.label(lab)
    a(f'buffer_load_dword v{t+1}, v{t}, s[8:11], 0 offen offset:{D_KVR} sc1')
    a('s_add_u32 s34, s34, 1'); a('s_cmp_gt_u32 s34, 2000000'); a(f's_cbranch_scc1 {fail}')
    a(f'v_cmp_ne_u32 vcc, {NWG}, v{t+1}')
    a('s_ff1_i32_b64 s35, vcc'); a('s_lshl_b32 s35, s35, 3'); a(f's_lshr_b32 s{ready_s}, {(64 << 24) | (KVROUNDS[1]*NWX << 16) | (KVROUNDS[0]*NWX << 8):#x}, s35'); a(f's_and_b32 s{ready_s}, s{ready_s}, 255')
    a(f's_cmp_gt_u32 s{ready_s}, s{need_s}'); a(f's_cbranch_scc1 {lab}_ok')
    a('s_sleep 8'); a(f's_branch {lab}')
    a.label(lab + '_ok')

def gen_gate(a, nwaves):
    GW, XF, D = 16, 96, 176
    a(f'v_lshrrev_b32 v{VT0}, 8, v{L16}'); a(f'v_lshlrev_b32 v{VT0}, 4, v{VT0}')
    for ks in range(20): a(f'buffer_load_dwordx4 {vr(GW+4*ks,4)}, v{VT0}, s[36:39], 0 offen offset:{64*ks}')
    a(f'v_bfe_u32 v{VT0+1}, v{L16}, 4, 4'); a(f'v_mul_u32_u24 v{VT0+2}, 1280, v{VT0+1}'); a(f'v_add_u32 v{VT0+2}, v{VT0+2}, v{VT0}')
    a(f'v_lshlrev_b32 v{VT0+3}, 2, v{VT0+1}')
    a(f's_mov_b32 s35, {f2u(-LOG2E):#x}')
    a.label('LG_loop')
    a('s_mul_i32 s50, s46, 20480'); a('s_lshl_b32 s51, s46, 6'); a(f's_add_u32 s51, s51, {GG}')
    for ks in range(20): a(f'buffer_load_dwordx4 {vr(XF+4*ks,4)}, v{VT0+2}, s[16:19], s50 offen offset:{64*ks}')
    for ks in range(20): a(f'v_mfma_f32_16x16x32_bf16 {vr(D,4)}, {vr(GW+4*ks,4)}, {vr(XF+4*ks,4)}, {"0" if ks == 0 else vr(D,4)}')
    a(f'v_mul_f32 v{D}, s35, v{D}'); a(f'v_exp_f32 v{D}, v{D}'); a(f'v_add_f32 v{D}, 1.0, v{D}'); a(f'v_rcp_f32 v{D}, v{D}')
    a('s_mov_b64 exec, 0xffff')
    a(f'buffer_store_dword v{D}, v{VT0+3}, s[12:15], s51 offen sc1')
    a('s_mov_b64 exec, -1')
    a(f's_add_u32 s46, s46, {nwaves}'); a('s_cmp_lt_u32 s46, 128'); a('s_cbranch_scc1 LG_loop')
    a('s_waitcnt vmcnt(0)')

def gen_phase1(a):
    a('s_load_dwordx2 s[20:21], s[0:1], 0')
    a('s_load_dwordx4 s[24:27], s[0:1], 24')
    a('s_load_dwordx2 s[22:23], s[0:1], 16')
    a('s_load_dwordx4 s[60:63], s[0:1], 64')
    a('s_load_dwordx2 s[64:65], s[0:1], 88')
    worker_setup(a)
    a('s_mov_b32 s75, 0'); rt(a)
    a(f'v_mov_b32 v{VT0}, 0'); a(f'v_lshrrev_b32 v{VT0+1}, 2, v{L16}')
    a(f's_lshl_b32 s34, s{SU}, 7'); a(f's_add_u32 s34, s34, {FLG}')
    a('s_mov_b64 exec, 0xffffffff')
    a(f'buffer_store_dword v{VT0}, v{VT0+1}, s[12:15], s34 offen sc1')
    a('s_mov_b64 exec, -1')
    a('s_waitcnt lgkmcnt(0)')
    a.srd(16, 20, 2621440)
    a(f's_mul_i32 s66, s{SU}, {65536 // NWX + 1}'); a('s_lshr_b32 s66, s66, 16'); a(f's_mul_i32 s34, s66, {NWX}'); a(f's_sub_u32 s67, s{SU}, s34')
    a('s_mov_b32 s46, s67'); a(f's_mov_b32 s47, {NWX}')
    a('s_and_b32 s68, s66, 15'); a('s_lshl_b32 s44, s68, 9'); a(f's_lshl_b32 s34, s{SW}, 7'); a('s_add_u32 s44, s44, s34'); a('s_add_u32 s45, s44, 64')
    a('s_lshl_b32 s69, s68, 14'); a(f's_lshr_b32 s34, s{SW}, 1'); a('s_lshl_b32 s34, s34, 13'); a('s_add_u32 s69, s69, s34')
    a(f's_and_b32 s70, s{SW}, 1'); a('s_mov_b32 s59, 0')
    a('s_cmp_ge_u32 s66, 16'); a('s_cbranch_scc1 LW_v')
    a.srd(36, 24, 5242880); a.srd(40, 24, 5242880)
    a('s_lshl_b32 s48, s70, 11'); a('s_add_u32 s48, s48, s69'); a(f's_add_u32 s48, s48, {KXG}')
    a('s_mov_b32 s71, 0')
    a.label('LW_kq')
    gen_gemm1(a, 'kq', 'LK')
    a('s_cmp_eq_u32 s71, 1'); a('s_cbranch_scc1 LW_p1b_done')
    a('s_branch LW_p1a_done')
    a.label('LW_v')
    a.srd(36, 26, 5242880); a.srd(40, 26, 5242880)
    a('s_lshl_b32 s48, s70, 12'); a('s_add_u32 s48, s48, s69'); a(f's_add_u32 s48, s48, {VXG}')
    gen_gemm1(a, 'v', 'LV')
    a.label('LW_p1a_done')
    signal(a, D_KVR + 8)
    rt(a)
    a('s_mov_b32 s46, s67'); a(f's_mov_b32 s47, {NWX}')
    a('s_cmp_ge_u32 s66, 16'); a('s_cbranch_scc1 LW_h')
    a.srd(36, 22, 5242880); a.srd(40, 22, 5242880)
    a('s_lshl_b32 s48, s70, 11'); a('s_add_u32 s48, s48, s69'); a(f's_add_u32 s48, s48, {QXG}')
    a('s_mov_b32 s71, 1')
    a('s_branch LW_kq')
    a.label('LW_h')
    a('s_cmp_ge_u32 s66, 30'); a('s_cbranch_scc1 LW_gate')
    a.srd(36, 60, 2211840); a.srd(40, 62, 2211840)
    a('s_lshl_b32 s34, s68, 2'); a(f's_add_u32 s34, s34, s{SW}')
    a('s_min_u32 s35, s34, 53'); a('s_lshl_b32 s44, s35, 6'); a('s_mov_b32 s45, s44')
    a('s_lshl_b32 s48, s34, 10'); a(f's_add_u32 s48, s48, {HG}')
    gen_gemm1(a, 'h', 'LH')
    a('s_branch LW_p1b_done')
    a.label('LW_gate')
    a.srd(36, 64, 1280)
    a(f's_sub_u32 s46, s{SU}, {30*NWX}'); a('s_lshl_b32 s46, s46, 2'); a(f's_add_u32 s46, s46, s{SW}')
    gen_gate(a, 8 * NWX)
    a.label('LW_p1b_done')
    signal(a, D_P1B)
    rt(a)


def lastrt(a, slot):
    if not RT: return
    a('s_mov_b32 s76, s75' if False else f's_mov_b32 s71, s75'); a(f's_mov_b32 s75, {4*slot}'); rt(a); a('s_mov_b32 s75, s71')

def poll_ws(a, t, soff, cond_fn, lab, fail, width=1, sleep=4):
    a(f'v_and_b32 v{t}, {0 if width == 1 else 16}, v{L16}'); a('s_mov_b32 s34, 0')
    a.label(lab)
    if width == 1: a(f'buffer_load_dword v{t+2}, v{t}, s[12:15], s{soff} offen sc1')
    else: a(f'buffer_load_dwordx4 {vr(t+2,4)}, v{t}, s[12:15], s{soff} offen sc1')
    a('s_add_u32 s34, s34, 1'); a('s_cmp_gt_u32 s34, 4000000'); a(f's_cbranch_scc1 {fail}')
    cond_fn()
    a(f's_cbranch_scc1 {lab}_ok')
    a(f's_sleep {sleep}'); a(f's_branch {lab}')
    a.label(lab + '_ok')

def gen_attn(a, fail):
    QF, KF, VF, KM, VM, SS, O, T = 16, 48, 80, 112, 128, 136, 160, 224
    SAA, SAB, SBB, SMA, SMB = SS, SS + 4, SS + 8, SS + 12, SS + 16
    a(f's_mov_b32 s54, {f2u(SCL):#x}')
    a(f'v_bfe_u32 v{T}, v{L16}, 4, 4'); a(f'v_lshrrev_b32 v{T+1}, 8, v{L16}'); a(f'v_lshlrev_b32 v{T+1}, 2, v{T+1}')
    for r in range(4):
        a(f'v_add_u32 v{T+2}, {r}, v{T+1}'); a(f'v_cmp_le_u32 s[{76+2*r}:{77+2*r}], v{T+2}, v{T}')
    a(f'v_mov_b32 v{VT0+8}, 0xff800000'); a(f'v_lshrrev_b32 v{VT0+9}, 1, v{L16}')
    NEG, L8 = VT0 + 8, VT0 + 9
    a('s_lshl_b32 s48, s47, 13'); a('s_lshl_b32 s49, s47, 7'); a(f's_add_u32 s49, s49, {FLG}'); a('s_lshl_b32 s50, s47, 12')
    a.label('LA_loop')
    a('s_lshl_b32 s51, s46, 18'); a('s_add_u32 s52, s51, s48')
    for nm, base, off in (('q', QF, QXG), ('k', KF, KXG), ('v', VF, VXG)):
        a(f's_add_u32 s53, s52, {off}'); a(f's_add_u32 s55, s53, 4096')
        for i in range(8): a(f'buffer_load_dwordx4 {vr(base+4*i,4)}, v{L16}, s[12:15], s{53 if i < 4 else 55} offen offset:{(i&3)*1024} sc1')
    for (d, kt, qt) in ((SAA, 0, 0), (SAB, 0, 1), (SBB, 1, 1)):
        for f in range(4): a(f'v_mfma_f32_16x16x32_bf16 {vr(d,4)}, {vr(KF+16*kt+4*f,4)}, {vr(QF+16*qt+4*f,4)}, {"0" if f == 0 else vr(d,4)}')
    for d in (SAA, SBB):
        for r in range(4): a(f'v_cndmask_b32 v{d+r}, v{NEG}, v{d+r}, s[{76+2*r}:{77+2*r}]')
    MA, MB, M2 = T, T + 1, T + 2
    a(f'v_max3_f32 v{MA}, v{SAA}, v{SAA+1}, v{SAA+2}'); a(f'v_max_f32 v{MA}, v{MA}, v{SAA+3}')
    a(f'v_max3_f32 v{MB}, v{SAB}, v{SAB+1}, v{SAB+2}'); a(f'v_max3_f32 v{MB}, v{MB}, v{SAB+3}, v{SBB}'); a(f'v_max3_f32 v{MB}, v{MB}, v{SBB+1}, v{SBB+2}'); a(f'v_max_f32 v{MB}, v{MB}, v{SBB+3}')
    def cond():
        a(f'v_min3_u32 v{VT0+2}, v{VT0+2}, v{VT0+3}, v{VT0+4}'); a(f'v_min_u32 v{VT0+2}, v{VT0+2}, v{VT0+5}')
        a(f'v_readlane_b32 s35, v{VT0+2}, 0'); a(f'v_readlane_b32 s56, v{VT0+2}, 1'); a('s_min_u32 s35, s35, s56'); a('s_cmp_gt_u32 s35, s46')
    poll_ws(a, VT0, 49, cond, 'LA_p', fail, width=4)
    lastrt(a, 9)
    a(f's_add_u32 s53, s52, {KVM}'); a('s_add_u32 s55, s53, 4096')
    for f in range(4): a(f'buffer_load_dwordx4 {vr(KM+4*f,4)}, v{L16}, s[12:15], s53 offen offset:{f*1024} sc1')
    for w in range(4): a(f'buffer_load_dwordx2 {vr(VM+2*w,2)}, v{L8}, s[12:15], s55 offen offset:{w*512} sc1')
    for f in range(4):
        for (d, qt) in ((SMA, 0), (SMB, 1)):
            a(f'v_mfma_f32_16x16x32_bf16 {vr(d,4)}, {vr(KM+4*f,4)}, {vr(QF+16*qt+4*f,4)}, {"0" if f == 0 else vr(d,4)}')
    a(f'v_max3_f32 v{MA}, v{MA}, v{SMA}, v{SMA+1}'); a(f'v_max3_f32 v{MB}, v{MB}, v{SMB}, v{SMB+1}')
    def xred(op, regs):
        for sw in ('v_permlane16_swap_b32', 'v_permlane32_swap_b32'):
            for i, m in enumerate(regs): a(f'v_mov_b32 v{M2+i}, v{m}')
            for i, m in enumerate(regs): a(f'{sw} v{m}, v{M2+i}')
            for i, m in enumerate(regs): a(f'{op} v{m}, v{m}, v{M2+i}')
    xred('v_max_f32', [MA, MB])
    a(f'v_mul_f32 v{MA}, s54, v{MA}'); a(f'v_mul_f32 v{MB}, s54, v{MB}')
    va = [SAA + r for r in range(4)] + [SMA, SMA + 1]
    vb = [SAB + r for r in range(8)] + [SMB, SMB + 1]
    for x in va: a(f'v_fma_f32 v{x}, v{x}, s54, -v{MA}')
    for x in vb: a(f'v_fma_f32 v{x}, v{x}, s54, -v{MB}')
    for x in va + vb: a(f'v_exp_f32 v{x}, v{x}')
    BA, BB, PA, PB = T + 8, T + 12, T + 16, T + 20
    a(f'v_cvt_pk_bf16_f32 v{BA}, v{SAA}, v{SAA+1}'); a(f'v_cvt_pk_bf16_f32 v{BA+1}, v{SAA+2}, v{SAA+3}'); a(f'v_mov_b32 v{BA+2}, 0'); a(f'v_mov_b32 v{BA+3}, 0')
    for i in range(4): a(f'v_cvt_pk_bf16_f32 v{BB+i}, v{SAB+2*i}, v{SAB+2*i+1}')
    for (p, sm) in ((PA, SMA), (PB, SMB)):
        a(f'v_cvt_pk_bf16_f32 v{p}, v{sm}, v{sm+1}'); a(f'v_mov_b32 v{p+1}, 0'); a(f'v_mov_b32 v{p+2}, 0'); a(f'v_cvt_pk_bf16_f32 v{p+3}, v{sm}, v{sm+1}')
    sums = []
    for (m, vals) in ((MA, va), (MB, vb)):
        sums.append(f'v_add_f32 v{m}, v{vals[0]}, v{vals[1]}')
        for x in vals[2:]: sums.append(f'v_add_f32 v{m}, v{m}, v{x}')
    for Tt in range(8):
        for mt, bt in ((0, BA), (1, BB)):
            a(f'v_mfma_f32_16x16x32_bf16 {vr(O+32*mt+4*Tt,4)}, {vr(VF+4*Tt,4)}, {vr(bt,4)}, 0')
            if sums: a(sums.pop(0))
    xred('v_add_f32', [MA, MB])
    a(f'v_rcp_f32 v{MA}, v{MA}'); a(f'v_rcp_f32 v{MB}, v{MB}')
    for mt, pm in ((0, PA), (1, PB)):
        for Tt in range(8):
            d = vr(O + 32 * mt + 4 * Tt, 4)
            a(f'v_mfma_f32_16x16x16_bf16 {d}, {vr(VM+2*(Tt>>1),2)}, {vr(pm+2*(Tt&1),2)}, {d}')
    a('s_add_u32 s53, s51, s50'); a(f's_add_u32 s53, s53, {OG}'); a('s_add_u32 s55, s53, 131072')
    for mt, m in ((0, MA), (1, MB)):
        for f in range(4):
            b = O + 32 * mt + 8 * f
            for r in range(8): a(f'v_mul_f32 v{b+r}, v{b+r}, v{m}')
            for r in range(4): a(f'v_cvt_pk_bf16_f32 v{b+r}, v{b+r}, v{b+4+r}')
            a(f'buffer_store_dwordx4 {vr(b,4)}, v{L16}, s[12:15], s{55 if mt else 53} offen offset:{f*1024} sc1')
    a('s_lshl_b32 s53, s46, 7'); a(f's_add_u32 s53, s53, {FLG + 32*128}')
    a(f'v_mov_b32 v{VT0}, 0'); a(f'v_mov_b32 v{VT0+1}, 1')
    a(f's_cmp_eq_u32 s{SW}, 0'); a('s_cselect_b32 s53, s53, 0x40000000')
    lastrt(a, 10)
    a('s_waitcnt vmcnt(0)'); a('s_barrier')
    a('s_mov_b64 exec, 1')
    a(f'buffer_atomic_add v{VT0+1}, v{VT0}, s[12:15], s53 offen')
    a('s_mov_b64 exec, -1')
    a(f's_add_u32 s46, s46, {NWX}'); a('s_cmp_lt_u32 s46, 64'); a('s_cbranch_scc1 LA_loop')

def gen_proj_load(a):
    a('s_load_dwordx2 s[20:21], s[0:1], 40'); a('s_load_dwordx2 s[22:23], s[0:1], 80'); a('s_load_dwordx2 s[24:25], s[0:1], 96')
    a(f's_mul_i32 s33, s{SW}, {9*4096}')
    set_vtr(a, 33, 4)
    lane_rows(a, 12, 4, 'r16', 1280)
    a('s_waitcnt lgkmcnt(0)')
    a.srd(36, 20, 5242880); a.srd(40, 22, 2211840); a.srd(16, 24, 2621440)
    a(f's_lshl_b32 s34, s47, 6'); a(f's_mul_i32 s44, s{SW}, {1024*1280}'); a('s_add_u32 s44, s44, s34')
    a(f's_mul_i32 s45, s{SW}, {448*1280}'); a('s_add_u32 s45, s45, s34')
    a('s_barrier')
    units = []
    for n in range(23):
        j = n if n < 7 else n - 7
        loc = wreg(16 + n, 7) if n < 7 else wreg(n - 7, 7)
        units.append((40 if n < 7 else 36, 45 if n < 7 else 44, [(64 * j + 32 * (i >> 1) + 2 * (i & 1)) * 1280 for i in range(4)], 12, loc))
    load_units(a, units, 9, 33, 'pw', toff=8)
    a('s_waitcnt vmcnt(0) lgkmcnt(0)'); a('s_barrier')

def gen_proj(a, fail):
    AA, AB, RING, NR = 16, 24, 32, 28
    GV, VO, VLW = 12, 14, 15
    a(f'v_bfe_u32 v{VT0+6}, v{L16}, 4, 4'); a(f'v_mul_u32_u24 v{VO}, 1280, v{VT0+6}'); a(f'v_lshrrev_b32 v{VT0+7}, 8, v{L16}'); a(f'v_lshl_add_u32 v{VO}, v{VT0+7}, 4, v{VO}')
    a(f'v_lshlrev_b32 v{VXS}, 2, v{VT0+6}')
    a(f's_lshl_b32 s34, s{SW}, 11'); a(f'v_add_u32 v{VLW}, s34, v{L16}')
    a(f's_mul_i32 s48, s{SW}, {14*1024}'); a('s_lshl_b32 s34, s58, 16'); a('s_add_u32 s48, s48, s34'); a(f's_add_u32 s48, s48, {HG}')
    a(f's_lshl_b32 s49, s{SW}, 15'); a('s_lshl_b32 s34, s58, 17'); a('s_add_u32 s49, s49, s34'); a(f's_add_u32 s49, s49, {OG}')
    a('s_mul_i32 s50, s58, 20480'); a('s_lshl_b32 s34, s47, 6'); a('s_add_u32 s50, s50, s34')
    a(f's_lshl_b32 s60, s58, 6'); a(f's_add_u32 s60, s60, {GG}')
    def gemm(nks, base_s, acc, wloc):
        def ld(ks):
            if (ks & 3) == 0: a(f's_add_u32 s56, s{base_s}, {ks*1024}')
            a(f'buffer_load_dwordx4 {vr(RING+4*(ks % NR),4)}, v{L16}, s[12:15], s56 offen offset:{(ks&3)*1024} sc1')
        for n in range(min(NR, nks)): ld(n)
        for ks in range(nks):
            k, b = wloc(ks >> 1)
            for t in range(2):
                c = vr(acc + 4 * t, 4)
                a(f'v_mfma_f32_16x16x32_bf16 {c}, {k}[{b+8*t+4*(ks&1)}:{b+8*t+4*(ks&1)+3}], {vr(RING+4*(ks % NR),4)}, {"0" if ks == 0 else c}')
            if ks + NR < nks: ld(ks + NR)
    a.label('LP_loop')
    a('s_lshl_b32 s51, s46, 17'); a('s_add_u32 s51, s51, s48')
    a('s_lshl_b32 s52, s46, 18'); a('s_add_u32 s52, s52, s49')
    a('s_lshl_b32 s53, s46, 7'); a('s_add_u32 s54, s53, s60'); a(f's_add_u32 s53, s53, {FLG + 32*128}')
    a(f'buffer_load_dword v{GV}, v{VXS}, s[12:15], s54 offen sc1')
    gemm(14, 51, AB, lambda j: wreg(16 + j, 7))
    a(f'v_sub_f32 v{VT0+6}, 1.0, v{GV}')
    for r in range(8): a(f'v_mul_f32 v{AB+r}, v{AB+r}, v{VT0+6}')
    def cond():
        a(f'v_readfirstlane_b32 s35, v{VT0+2}'); a('s_cmp_ge_u32 s35, 8')
    a(f's_cmp_lg_u32 s{SW}, 0'); a('s_cbranch_scc1 LP_p_ok')
    poll_ws(a, VT0, 53, cond, 'LP_p', fail, sleep=2)
    a('s_barrier')
    lastrt(a, 9)
    gemm(32, 52, AA, lambda j: wreg(j, 7))
    for r in range(8): a(f'v_fma_f32 v{AB+r}, v{AA+r}, v{GV}, v{AB+r}')
    lastrt(a, 10)
    for q in range(2): a(f'ds_write_b128 v{VLW}, {vr(AB+4*q,4)} offset:{q*1024}')
    a('s_waitcnt lgkmcnt(0)'); a('s_barrier')
    a(f's_cmp_ge_u32 s{SW}, 1'); a('s_cbranch_scc1 LP_skip')
    for w in range(4):
        for t in range(2): a(f'ds_read_b128 {vr(RING+8*w+4*t,4)}, v{L16} offset:{w*2048 + t*1024}')
    for r in range(8):
        a(f'v_add_f32 v{RING+r}, v{RING+r}, v{RING+8+r}'); a(f'v_add_f32 v{RING+16+r}, v{RING+16+r}, v{RING+24+r}')
    for r in range(8): a(f'v_add_f32 v{RING+r}, v{RING+r}, v{RING+16+r}')
    for i in range(4): a(f'v_cvt_pk_bf16_f32 v{RING+32+i}, v{RING+2*i}, v{RING+2*i+1}')
    a('s_mul_i32 s34, s46, 40960'); a('s_add_u32 s34, s34, s50')
    a(f'buffer_store_dwordx4 {vr(RING+32,4)}, v{VO}, s[16:19], s34 offen')
    a.label('LP_skip')
    a('s_barrier')
    a(f's_add_u32 s46, s46, {NWX//2}'); a('s_cmp_lt_u32 s46, 64'); a('s_cbranch_scc1 LP_loop')

def gen_worker(a, endlab):
    gen_phase1(a)
    a(f's_lshr_b32 s46, s{SU}, 5'); a(f's_and_b32 s47, s{SU}, 31')
    a('s_cmp_ge_u32 s47, 28'); a(f's_cbranch_scc1 {endlab}')
    a('s_cmp_ge_u32 s47, 20'); a('s_cbranch_scc1 LW_attn')
    gen_proj_load(a)
    rt(a)
    wait_dbg(a, D_P1B, NWG, 'LW_w1', endlab)
    rt(a)
    a('s_and_b32 s58, s46, 1'); a('s_lshr_b32 s46, s46, 1')
    gen_proj(a, endlab)
    rt(a)
    a(f's_branch {endlab}')
    a.label('LW_attn')
    a('s_sub_u32 s47, s47, 20'); a('s_lshl_b32 s47, s47, 2'); a(f's_add_u32 s47, s47, s{SW}')
    wait_dbg(a, D_P1B, NWG, 'LW_w2', endlab)
    rt(a)
    gen_attn(a, endlab)
    rt(a)
```

```python
from al import *
from layout import *
import math, struct
def f2u(x): return struct.unpack('<I', struct.pack('<f', x))[0]
def vr(b, n): return f'v[{b}:{b+n-1}]'
LOG2E = math.log2(math.e)
SCL = (128 ** -0.5) * LOG2E
DPPM = 'row_mask:0xf bank_mask:0xf'
SW = 31
SU = 30
L16, VTR, VXS, VXR, VT0 = 0, 1, 2, 3, 4

def wreg(i, nv):
    return ('a', 16 * i) if i < 16 else ('v', 256 - 16 * nv + 16 * (i - 16))

def load_units(a, units, nslots, ringbase_s, tag, toff=32):
    def dma(n):
        srd, sb, imms, vo, _ = units[n]
        for i in range(4):
            a(f's_add_u32 s34, s{sb}, {imms[i]}')
            a(f's_add_u32 m0, s{ringbase_s}, {(n % nslots) * 4096 + i * 1024}')
            a(f'buffer_load_dwordx4 v{vo}, s[{srd}:{srd+3}], s34 offen lds', tok=f'{tag}d{n}')
    for n in range(min(nslots, len(units))): dma(n)
    for n, u in enumerate(units):
        a.wait_tok(f'{tag}d{n}')
        k, b = u[4]
        for t in range(2):
            for rp in range(4):
                a(f'ds_read_b64_tr_b16 {k}[{b+8*t+2*rp}:{b+8*t+2*rp+1}], v{VTR} offset:{(n % nslots)*4096 + rp*1024 + t*toff}', tok=f'{tag}t{n}')
        if n + nslots < len(units):
            a.wait_tok(f'{tag}t{n}')
            dma(n + nslots)

def worker_setup(a):
    a('v_lshrrev_b32 v16, 6, v0'); a(f'v_readfirstlane_b32 s{SW}, v16')
    a('v_and_b32 v17, 63, v0')
    a(f'v_lshlrev_b32 v{L16}, 4, v17')
    a('v_lshrrev_b32 v18, 4, v17'); a('v_lshlrev_b32 v18, 1, v18'); a('v_mov_b32 v19, 0x78'); a('v_lshrrev_b32 v19, v18, v19'); a('v_xor_b32 v19, v19, v17'); a('v_and_b32 v19, 3, v19')
    a('v_lshrrev_b32 v20, 2, v17'); a(f'v_mul_u32_u24 v{VXS}, 1280, v20'); a(f'v_lshl_add_u32 v{VXS}, v19, 4, v{VXS}')
    a('v_bfe_u32 v18, v17, 2, 2'); a('v_lshlrev_b32 v18, 1, v18'); a('v_mov_b32 v19, 0x78'); a('v_lshrrev_b32 v19, v18, v19'); a('v_lshrrev_b32 v21, 4, v17'); a('v_xor_b32 v19, v19, v21'); a('v_and_b32 v19, 3, v19')
    a('v_and_b32 v20, 15, v17'); a(f'v_lshlrev_b32 v{VXR}, 6, v20'); a(f'v_lshl_add_u32 v{VXR}, v19, 4, v{VXR}')

def set_vtr(a, ring_s, sh=3):
    a(f'v_lshrrev_b32 v{VT0}, 6, v{L16}'); a(f'v_lshlrev_b32 v{VT0}, 6, v{VT0}'); a(f'v_bfe_u32 v{VT0+1}, v{L16}, 4, 2')
    a(f'v_lshl_add_u32 v{VTR}, v{VT0+1}, {sh}, v{VT0}'); a(f'v_add_u32 v{VTR}, s{ring_s}, v{VTR}')

def lane_rows(a, dst, gmul, rfun, stride):
    t = VT0
    a(f'v_lshrrev_b32 v{t}, 8, v{L16}'); a(f'v_mul_u32_u24 v{t}, {gmul}, v{t}')
    a(f'v_bfe_u32 v{t+1}, v{L16}, 6, 2')
    if rfun == 'r': a(f'v_add_u32 v{t}, v{t}, v{t+1}')
    else:
        a(f'v_lshrrev_b32 v{t+2}, 1, v{t+1}'); a(f'v_add_u32 v{t}, v{t}, v{t+2}'); a(f'v_and_b32 v{t+1}, 1, v{t+1}'); a(f'v_lshl_add_u32 v{t}, v{t+1}, 4, v{t}')
    a(f's_mov_b32 s34, {stride}'); a(f'v_mul_lo_u32 v{t}, v{t}, s34'); a(f'v_bfe_u32 v{t+1}, v{L16}, 4, 2'); a(f'v_lshl_add_u32 v{dst}, v{t+1}, 4, v{t}')

XB = 40960
PREF = False
NROUND = -(-64 // NWX)
RT = True
RTOFF = FLG + 0x200000
def rt(a, t=VT0+6):
    if not RT: return
    a('s_memrealtime s[72:73]'); a('s_waitcnt lgkmcnt(0)')
    a(f's_lshl_b32 s74, s2, 2'); a(f's_add_u32 s74, s74, s{SW}'); a('s_lshl_b32 s74, s74, 7'); a(f's_add_u32 s74, s74, {RTOFF}')
    a('s_add_u32 s74, s74, s75'); a('s_add_u32 s75, s75, 4')
    a(f'v_mov_b32 v{t}, 0'); a(f'v_mov_b32 v{t+1}, s72')
    a(f'buffer_store_dword v{t+1}, v{t}, s[12:15], s74 offen')
def gen_gemm1(a, kind, P):
    stride = 3456 if kind == 'h' else 8192
    ostride = {'kq': 262144, 'v': 262144, 'h': 131072}[kind]
    WO = 12
    XA = 13
    ACC = 16
    XF = 48
    OUT = 80
    a(f's_mul_i32 s33, s{SW}, {7*4096}'); a(f's_add_u32 s33, s33, {XB}')
    set_vtr(a, 33)
    lane_rows(a, WO, 8, 'r', stride)
    a(f's_mul_i32 s50, s{SW}, 10240')
    a(f's_mul_i32 s51, s{SW}, 320')
    def xdma(n, buf_s, tile_s, tok):
        return [f's_add_u32 s34, s{tile_s}, {(n >> 1) * 64 + (n & 1) * 20480}', f's_add_u32 m0, s{buf_s}, {n * 1024}',
                (f'buffer_load_dwordx4 v{VXS}, s[16:19], s34 offen lds', tok)]
    def emit(p):
        if isinstance(p, tuple): a(p[0], tok=p[1])
        else: a(p)
    a(f's_mul_i32 s52, s46, 40960'); a('s_add_u32 s52, s52, s51'); a('s_mul_i32 s54, s47, 40960'); a('s_mov_b32 s53, s50')
    a('s_barrier')
    for n in range(10):
        for p in xdma(n, 53, 52, f'{P}x'): emit(p)
    units = []
    for j in range(10):
        for pr in range(2):
            units.append((36 + 4 * pr, 44 + pr, [(64 * j + 32 * (i >> 1) + 4 * (i & 1)) * stride for i in range(4)], WO, wreg(2 * j + pr, 4)))
    load_units(a, units, 7, 33, P + 'w')
    a('s_waitcnt vmcnt(0) lgkmcnt(0)'); a('s_barrier')
    rt(a)
    a('s_add_u32 s52, s52, s54'); a(f's_add_u32 s53, s50, {XB}')
    for n in range(10):
        for p in xdma(n, 53, 52, f'{P}x1'): emit(p)
    a('s_add_u32 s52, s52, s54'); a(f's_add_u32 s53, s50, {2*XB}')
    a(f's_mov_b32 s55, 0')
    a(f's_mul_i32 s56, s46, {ostride}'); a('s_add_u32 s56, s56, s48'); a(f's_mul_i32 s57, s47, {ostride}')
    a.label(f'{P}_tile')
    a(f'v_add_u32 v{XA}, s55, v{VXR}')
    side = []
    for n in range(10): side += [xdma(n, 53, 52, f'{P}xn')]
    def rdx(ks):
        for mt in range(2): a(f'ds_read_b128 {vr(XF + 8*(ks % 4) + 4*mt, 4)}, v{XA} offset:{(2*ks+mt)*1024}')
    rdx(0); rdx(1); rdx(2)
    for ks in range(20):
        j, kh = ks >> 1, ks & 1
        n = 0
        for pr in range(2):
            k, b = wreg(2 * j + pr, 4)
            for t in range(2):
                Wf = f'{k}[{b+8*t+4*kh}:{b+8*t+4*kh+3}]'
                for mt in range(2):
                    c = vr(ACC + 16 * mt + 8 * pr + 4 * t, 4); Xf = vr(XF + 8 * (ks % 4) + 4 * mt, 4)
                    A_, B_ = (Xf, Wf) if kind == 'v' else (Wf, Xf)
                    a(f'v_mfma_f32_16x16x32_bf16 {c}, {A_}, {B_}, {"0" if ks == 0 else c}')
                    n += 1
                    if n == 1 and ks + 3 < 20: rdx(ks + 3)
                    if n == 4 and side and ks >= 1:
                        for p in side.pop(0): emit(p)
    if kind == 'kq':
        for mt in range(2):
            for pr in range(2):
                o = OUT + 8 * mt + 4 * pr; b = ACC + 16 * mt + 8 * pr
                for r in range(4): a(f'v_cvt_pk_bf16_f32 v{o+r}, v{b+r}, v{b+4+r}')
                if mt == 1 and pr == 0: a('s_add_u32 s35, s56, 4096')
                a(f'buffer_store_dwordx4 {vr(o,4)}, v{L16}, s[12:15], s{35 if mt else 56} offen offset:{pr*1024} sc1')
    elif kind == 'v':
        for T in range(4):
            o = OUT + 4 * T
            for mt in range(2):
                b = ACC + 16 * mt + 4 * T
                a(f'v_cvt_pk_bf16_f32 v{o+2*mt}, v{b}, v{b+1}'); a(f'v_cvt_pk_bf16_f32 v{o+2*mt+1}, v{b+2}, v{b+3}')
            a(f'buffer_store_dwordx4 {vr(o,4)}, v{L16}, s[12:15], s56 offen offset:{T*1024} sc1')
    else:
        a(f's_mov_b32 s35, {f2u(-LOG2E):#x}')
        for mt in range(2):
            G = ACC + 16 * mt; U = G + 8; E = OUT + 8
            for r in range(8): a(f'v_mul_f32 v{E+r}, s35, v{G+r}')
            for r in range(8): a(f'v_exp_f32 v{E+r}, v{E+r}')
            for r in range(8): a(f'v_mul_f32 v{G+r}, v{G+r}, v{U+r}')
            for r in range(8): a(f'v_add_f32 v{E+r}, 1.0, v{E+r}')
            for r in range(8): a(f'v_rcp_f32 v{E+r}, v{E+r}')
            for r in range(8): a(f'v_mul_f32 v{G+r}, v{G+r}, v{E+r}')
            o = OUT + 4 * mt
            for r in range(4): a(f'v_cvt_pk_bf16_f32 v{o+r}, v{G+r}, v{G+4+r}')
            if mt == 1: a('s_add_u32 s58, s56, 65536')
            a(f'buffer_store_dwordx4 {vr(o,4)}, v{L16}, s[12:15], s{58 if mt else 56} offen sc1')
    nst = 2 if kind == 'h' else 4
    a('s_add_u32 s46, s46, s47'); a('s_add_u32 s52, s52, s54'); a('s_add_u32 s56, s56, s57')
    a(f's_add_u32 s53, s55, s50')
    a(f's_add_u32 s55, s55, {XB}'); a(f's_cmp_eq_u32 s55, {3*XB}'); a('s_cselect_b32 s55, 0, s55')
    a(f's_waitcnt vmcnt({10 + nst})')
    a('s_barrier')
    if kind != 'h':
        a('s_add_u32 s59, s59, 1')
        a(f's_cmp_lg_u32 s{SW}, 0'); a(f's_cbranch_scc1 {P}_nosig')
        a(f's_cmp_eq_u32 s59, {KVROUNDS[0]+1}'); a(f's_cselect_b32 s35, {D_KVR}, 0')
        a(f's_cmp_eq_u32 s59, {KVROUNDS[1]+1}'); a(f's_cselect_b32 s35, {D_KVR+4}, s35')
        a('s_cmp_eq_u32 s35, 0'); a(f's_cbranch_scc1 {P}_nosig')
        a(f'v_mov_b32 v{VT0}, s35'); a(f'v_mov_b32 v{VT0+1}, 1')
        a('s_mov_b64 exec, 1')
        a(f'buffer_atomic_add v{VT0+1}, v{VT0}, s[8:11], 0 offen')
        a('s_mov_b64 exec, -1')
        a.label(f'{P}_nosig')
    a('s_cmp_lt_u32 s46, 64'); a(f's_cbranch_scc1 {P}_tile')
    a('s_waitcnt vmcnt(0)')

def signal(a, off):
    lab = a.newlabel('LSG')
    a('s_barrier')
    a(f's_cmp_lg_u32 s{SW}, 0'); a(f's_cbranch_scc1 {lab}')
    a(f'v_mov_b32 v{VT0}, {off}'); a(f'v_mov_b32 v{VT0+1}, 1')
    a('s_mov_b64 exec, 1')
    a(f'buffer_atomic_add v{VT0+1}, v{VT0}, s[8:11], 0 offen')
    a('s_mov_b64 exec, -1')
    a.label(lab)

def wait_dbg(a, off, target, lab, fail, t=VT0):
    a(f's_cmp_lg_u32 s{SW}, 0'); a(f's_cbranch_scc1 {lab}_ok')
    a(f'v_mov_b32 v{t}, {off}'); a('s_mov_b32 s34, 0')
    a.label(lab)
    a(f'buffer_load_dword v{t+1}, v{t}, s[8:11], 0 offen sc1')
    a('s_add_u32 s34, s34, 1'); a('s_cmp_gt_u32 s34, 2000000'); a(f's_cbranch_scc1 {fail}')
    a(f'v_readfirstlane_b32 s35, v{t+1}'); a(f's_cmp_ge_u32 s35, {target}'); a(f's_cbranch_scc1 {lab}_ok')
    a('s_sleep 16'); a(f's_branch {lab}')
    a.label(lab + '_ok')
    a('s_barrier')

def kv_wait(a, need_s, ready_s, lab, fail, t, l16):
    a(f'v_lshrrev_b32 v{t}, 2, v{l16}'); a(f'v_min_u32 v{t}, 12, v{t}'); a('s_mov_b32 s34, 0')
    a.label(lab)
    a(f'buffer_load_dword v{t+1}, v{t}, s[8:11], 0 offen offset:{D_KVR} sc1')
    a('s_add_u32 s34, s34, 1'); a('s_cmp_gt_u32 s34, 2000000'); a(f's_cbranch_scc1 {fail}')
    a(f'v_cmp_gt_u32 vcc, {NWG}, v{t+1}')
    a('s_ff1_i32_b64 s35, vcc'); a('s_lshl_b32 s35, s35, 3'); a(f's_lshr_b32 s{ready_s}, {(64 << 24) | (KVROUNDS[1]*NWX << 16) | (KVROUNDS[0]*NWX << 8):#x}, s35'); a(f's_and_b32 s{ready_s}, s{ready_s}, 255')
    a(f's_cmp_gt_u32 s{ready_s}, s{need_s}'); a(f's_cbranch_scc1 {lab}_ok')
    a('s_sleep 8'); a(f's_branch {lab}')
    a.label(lab + '_ok')

def gen_gate(a, nwaves):
    GW, XF, D = 16, 96, 176
    a(f'v_lshrrev_b32 v{VT0}, 8, v{L16}'); a(f'v_lshlrev_b32 v{VT0}, 4, v{VT0}')
    for ks in range(20): a(f'buffer_load_dwordx4 {vr(GW+4*ks,4)}, v{VT0}, s[36:39], 0 offen offset:{64*ks}')
    a(f'v_bfe_u32 v{VT0+1}, v{L16}, 4, 4'); a(f'v_mul_u32_u24 v{VT0+2}, 1280, v{VT0+1}'); a(f'v_add_u32 v{VT0+2}, v{VT0+2}, v{VT0}')
    a(f'v_lshlrev_b32 v{VT0+3}, 2, v{VT0+1}')
    a(f's_mov_b32 s35, {f2u(-LOG2E):#x}')
    a.label('LG_loop')
    a('s_mul_i32 s50, s46, 20480'); a('s_lshl_b32 s51, s46, 6'); a(f's_add_u32 s51, s51, {GG}')
    for ks in range(20): a(f'buffer_load_dwordx4 {vr(XF+4*ks,4)}, v{VT0+2}, s[16:19], s50 offen offset:{64*ks}')
    for ks in range(20): a(f'v_mfma_f32_16x16x32_bf16 {vr(D,4)}, {vr(GW+4*ks,4)}, {vr(XF+4*ks,4)}, {"0" if ks == 0 else vr(D,4)}')
    a(f'v_mul_f32 v{D}, s35, v{D}'); a(f'v_exp_f32 v{D}, v{D}'); a(f'v_add_f32 v{D}, 1.0, v{D}'); a(f'v_rcp_f32 v{D}, v{D}')
    a('s_mov_b64 exec, 0xffff')
    a(f'buffer_store_dword v{D}, v{VT0+3}, s[12:15], s51 offen sc1')
    a('s_mov_b64 exec, -1')
    a(f's_add_u32 s46, s46, {nwaves}'); a('s_cmp_lt_u32 s46, 128'); a('s_cbranch_scc1 LG_loop')
    a('s_waitcnt vmcnt(0)')

def gen_phase1(a):
    a('s_load_dwordx2 s[20:21], s[0:1], 0')
    a('s_load_dwordx4 s[24:27], s[0:1], 24')
    a('s_load_dwordx2 s[22:23], s[0:1], 16')
    a('s_load_dwordx4 s[60:63], s[0:1], 64')
    a('s_load_dwordx2 s[64:65], s[0:1], 88')
    a('s_load_dwordx2 s[28:29], s[0:1], 40')
    worker_setup(a)
    a('s_mov_b32 s75, 0'); rt(a)
    a(f'v_mov_b32 v{VT0}, 0'); a(f'v_lshrrev_b32 v{VT0+1}, 2, v{L16}')
    a(f's_lshl_b32 s34, s{SU}, 7'); a(f's_add_u32 s34, s34, {FLG}')
    a('s_mov_b64 exec, 0xffffffff')
    a(f'buffer_store_dword v{VT0}, v{VT0+1}, s[12:15], s34 offen sc1')
    a('s_mov_b64 exec, -1')
    a('s_waitcnt lgkmcnt(0)')
    a.srd(16, 20, 2621440)
    if PREF:
        per = 5242880 // (NWG * 4)
        a.srd(36, 22, 5242880); a.srd(40, 28, 5242880)
        a(f's_lshl_b32 s34, s{SU}, 2'); a(f's_add_u32 s34, s34, s{SW}'); a(f's_mul_i32 s34, s34, {per}'); a('s_and_b32 s34, s34, 0xffffff80'); a('s_add_u32 s35, s34, 4096')
        for srd in (36, 40):
            for i in range(7): a(f'buffer_load_dwordx4 v[{96+4*i}:{99+4*i}], v{L16}, s[{srd}:{srd+3}], s{34 if i < 4 else 35} offen offset:{(i%4)*1024} nt')
    a(f's_mul_i32 s66, s{SU}, {65536 // NWX + 1}'); a('s_lshr_b32 s66, s66, 16'); a(f's_mul_i32 s34, s66, {NWX}'); a(f's_sub_u32 s67, s{SU}, s34')
    a('s_mov_b32 s46, s67'); a(f's_mov_b32 s47, {NWX}')
    a('s_and_b32 s68, s66, 15'); a('s_lshl_b32 s44, s68, 9'); a(f's_lshl_b32 s34, s{SW}, 7'); a('s_add_u32 s44, s44, s34'); a('s_add_u32 s45, s44, 64')
    a('s_lshl_b32 s69, s68, 14'); a(f's_lshr_b32 s34, s{SW}, 1'); a('s_lshl_b32 s34, s34, 13'); a('s_add_u32 s69, s69, s34')
    a(f's_and_b32 s70, s{SW}, 1'); a('s_mov_b32 s59, 0')
    a('s_cmp_ge_u32 s66, 16'); a('s_cbranch_scc1 LW_v')
    a.srd(36, 24, 5242880); a.srd(40, 24, 5242880)
    a('s_lshl_b32 s48, s70, 11'); a('s_add_u32 s48, s48, s69'); a(f's_add_u32 s48, s48, {KXG}')
    a('s_mov_b32 s71, 0')
    a.label('LW_kq')
    gen_gemm1(a, 'kq', 'LK')
    a('s_cmp_eq_u32 s71, 1'); a('s_cbranch_scc1 LW_p1b_done')
    a('s_branch LW_p1a_done')
    a.label('LW_v')
    a.srd(36, 26, 5242880); a.srd(40, 26, 5242880)
    a('s_lshl_b32 s48, s70, 12'); a('s_add_u32 s48, s48, s69'); a(f's_add_u32 s48, s48, {VXG}')
    gen_gemm1(a, 'v', 'LV')
    a.label('LW_p1a_done')
    signal(a, D_KVR + 8)
    rt(a)
    a('s_mov_b32 s46, s67'); a(f's_mov_b32 s47, {NWX}')
    a('s_cmp_ge_u32 s66, 16'); a('s_cbranch_scc1 LW_h')
    a.srd(36, 22, 5242880); a.srd(40, 22, 5242880)
    a('s_lshl_b32 s48, s70, 11'); a('s_add_u32 s48, s48, s69'); a(f's_add_u32 s48, s48, {QXG}')
    a('s_mov_b32 s71, 1')
    a('s_branch LW_kq')
    a.label('LW_h')
    a('s_cmp_ge_u32 s66, 30'); a('s_cbranch_scc1 LW_gate')
    a.srd(36, 60, 2211840); a.srd(40, 62, 2211840)
    a('s_lshl_b32 s34, s68, 2'); a(f's_add_u32 s34, s34, s{SW}')
    a('s_min_u32 s35, s34, 53'); a('s_lshl_b32 s44, s35, 6'); a('s_mov_b32 s45, s44')
    a('s_lshl_b32 s48, s34, 10'); a(f's_add_u32 s48, s48, {HG}')
    gen_gemm1(a, 'h', 'LH')
    a('s_branch LW_p1b_done')
    a.label('LW_gate')
    a.srd(36, 64, 1280)
    a(f's_sub_u32 s46, s{SU}, {30*NWX}'); a('s_lshl_b32 s46, s46, 2'); a(f's_add_u32 s46, s46, s{SW}')
    gen_gate(a, 8 * NWX)
    a.label('LW_p1b_done')
    signal(a, D_P1B)
    rt(a)


def lastrt(a, slot):
    if not RT: return
    a('s_mov_b32 s76, s75' if False else f's_mov_b32 s71, s75'); a(f's_mov_b32 s75, {4*slot}'); rt(a); a('s_mov_b32 s75, s71')

def poll_ws(a, t, soff, cond_fn, lab, fail, width=1, sleep=4):
    a(f'v_and_b32 v{t}, {0 if width == 1 else 16}, v{L16}'); a('s_mov_b32 s34, 0')
    a.label(lab)
    if width == 1: a(f'buffer_load_dword v{t+2}, v{t}, s[12:15], s{soff} offen sc1')
    else: a(f'buffer_load_dwordx4 {vr(t+2,4)}, v{t}, s[12:15], s{soff} offen sc1')
    a('s_add_u32 s34, s34, 1'); a('s_cmp_gt_u32 s34, 4000000'); a(f's_cbranch_scc1 {fail}')
    cond_fn()
    a(f's_cbranch_scc1 {lab}_ok')
    a(f's_sleep {sleep}'); a(f's_branch {lab}')
    a.label(lab + '_ok')

def gen_attn(a, fail):
    QF, KF, VF, KM, VM, SS, O, T = 16, 48, 80, 112, 128, 136, 160, 224
    SAA, SAB, SBB, SMA, SMB = SS, SS + 4, SS + 8, SS + 12, SS + 16
    a(f's_mov_b32 s54, {f2u(SCL):#x}')
    a(f'v_bfe_u32 v{T}, v{L16}, 4, 4'); a(f'v_lshrrev_b32 v{T+1}, 8, v{L16}'); a(f'v_lshlrev_b32 v{T+1}, 2, v{T+1}')
    for r in range(4):
        a(f'v_add_u32 v{T+2}, {r}, v{T+1}'); a(f'v_cmp_le_u32 s[{76+2*r}:{77+2*r}], v{T+2}, v{T}')
    a(f'v_mov_b32 v{VT0+8}, 0xff800000'); a(f'v_lshrrev_b32 v{VT0+9}, 1, v{L16}')
    NEG, L8 = VT0 + 8, VT0 + 9
    a('s_lshl_b32 s48, s47, 13'); a('s_lshl_b32 s49, s47, 7'); a(f's_add_u32 s49, s49, {FLG}'); a('s_lshl_b32 s50, s47, 12')
    a.label('LA_loop')
    a('s_lshl_b32 s51, s46, 18'); a('s_add_u32 s52, s51, s48')
    for nm, base, off in (('q', QF, QXG), ('k', KF, KXG), ('v', VF, VXG)):
        a(f's_add_u32 s53, s52, {off}'); a(f's_add_u32 s55, s53, 4096')
        for i in range(8): a(f'buffer_load_dwordx4 {vr(base+4*i,4)}, v{L16}, s[12:15], s{53 if i < 4 else 55} offen offset:{(i&3)*1024} sc1')
    for (d, kt, qt) in ((SAA, 0, 0), (SAB, 0, 1), (SBB, 1, 1)):
        for f in range(4): a(f'v_mfma_f32_16x16x32_bf16 {vr(d,4)}, {vr(KF+16*kt+4*f,4)}, {vr(QF+16*qt+4*f,4)}, {"0" if f == 0 else vr(d,4)}')
    for d in (SAA, SBB):
        for r in range(4): a(f'v_cndmask_b32 v{d+r}, v{NEG}, v{d+r}, s[{76+2*r}:{77+2*r}]')
    MA, MB, M2 = T, T + 1, T + 2
    a(f'v_max3_f32 v{MA}, v{SAA}, v{SAA+1}, v{SAA+2}'); a(f'v_max_f32 v{MA}, v{MA}, v{SAA+3}')
    a(f'v_max3_f32 v{MB}, v{SAB}, v{SAB+1}, v{SAB+2}'); a(f'v_max3_f32 v{MB}, v{MB}, v{SAB+3}, v{SBB}'); a(f'v_max3_f32 v{MB}, v{MB}, v{SBB+1}, v{SBB+2}'); a(f'v_max_f32 v{MB}, v{MB}, v{SBB+3}')
    def cond():
        a(f'v_min3_u32 v{VT0+2}, v{VT0+2}, v{VT0+3}, v{VT0+4}'); a(f'v_min_u32 v{VT0+2}, v{VT0+2}, v{VT0+5}')
        a(f'v_readlane_b32 s35, v{VT0+2}, 0'); a(f'v_readlane_b32 s56, v{VT0+2}, 1'); a('s_min_u32 s35, s35, s56'); a('s_cmp_gt_u32 s35, s46')
    poll_ws(a, VT0, 49, cond, 'LA_p', fail, width=4)
    lastrt(a, 9)
    a(f's_add_u32 s53, s52, {KVM}'); a('s_add_u32 s55, s53, 4096')
    for f in range(4): a(f'buffer_load_dwordx4 {vr(KM+4*f,4)}, v{L16}, s[12:15], s53 offen offset:{f*1024} sc1')
    for w in range(4): a(f'buffer_load_dwordx2 {vr(VM+2*w,2)}, v{L8}, s[12:15], s55 offen offset:{w*512} sc1')
    for f in range(4):
        for (d, qt) in ((SMA, 0), (SMB, 1)):
            a(f'v_mfma_f32_16x16x32_bf16 {vr(d,4)}, {vr(KM+4*f,4)}, {vr(QF+16*qt+4*f,4)}, {"0" if f == 0 else vr(d,4)}')
    a(f'v_max3_f32 v{MA}, v{MA}, v{SMA}, v{SMA+1}'); a(f'v_max3_f32 v{MB}, v{MB}, v{SMB}, v{SMB+1}')
    def xred(op, regs):
        for sw in ('v_permlane16_swap_b32', 'v_permlane32_swap_b32'):
            for i, m in enumerate(regs): a(f'v_mov_b32 v{M2+i}, v{m}')
            for i, m in enumerate(regs): a(f'{sw} v{m}, v{M2+i}')
            for i, m in enumerate(regs): a(f'{op} v{m}, v{m}, v{M2+i}')
    xred('v_max_f32', [MA, MB])
    a(f'v_mul_f32 v{MA}, s54, v{MA}'); a(f'v_mul_f32 v{MB}, s54, v{MB}')
    va = [SAA + r for r in range(4)] + [SMA, SMA + 1]
    vb = [SAB + r for r in range(8)] + [SMB, SMB + 1]
    for x in va: a(f'v_fma_f32 v{x}, v{x}, s54, -v{MA}')
    for x in vb: a(f'v_fma_f32 v{x}, v{x}, s54, -v{MB}')
    for x in va + vb: a(f'v_exp_f32 v{x}, v{x}')
    BA, BB, PA, PB = T + 8, T + 12, T + 16, T + 20
    a(f'v_cvt_pk_bf16_f32 v{BA}, v{SAA}, v{SAA+1}'); a(f'v_cvt_pk_bf16_f32 v{BA+1}, v{SAA+2}, v{SAA+3}'); a(f'v_mov_b32 v{BA+2}, 0'); a(f'v_mov_b32 v{BA+3}, 0')
    for i in range(4): a(f'v_cvt_pk_bf16_f32 v{BB+i}, v{SAB+2*i}, v{SAB+2*i+1}')
    for (p, sm) in ((PA, SMA), (PB, SMB)):
        a(f'v_cvt_pk_bf16_f32 v{p}, v{sm}, v{sm+1}'); a(f'v_mov_b32 v{p+1}, 0'); a(f'v_mov_b32 v{p+2}, 0'); a(f'v_cvt_pk_bf16_f32 v{p+3}, v{sm}, v{sm+1}')
    sums = []
    for (m, vals) in ((MA, va), (MB, vb)):
        sums.append(f'v_add_f32 v{m}, v{vals[0]}, v{vals[1]}')
        for x in vals[2:]: sums.append(f'v_add_f32 v{m}, v{m}, v{x}')
    for Tt in range(8):
        for mt, bt in ((0, BA), (1, BB)):
            a(f'v_mfma_f32_16x16x32_bf16 {vr(O+32*mt+4*Tt,4)}, {vr(VF+4*Tt,4)}, {vr(bt,4)}, 0')
            if sums: a(sums.pop(0))
    xred('v_add_f32', [MA, MB])
    a(f'v_rcp_f32 v{MA}, v{MA}'); a(f'v_rcp_f32 v{MB}, v{MB}')
    for mt, pm in ((0, PA), (1, PB)):
        for Tt in range(8):
            d = vr(O + 32 * mt + 4 * Tt, 4)
            a(f'v_mfma_f32_16x16x16_bf16 {d}, {vr(VM+2*(Tt>>1),2)}, {vr(pm+2*(Tt&1),2)}, {d}')
    a('s_add_u32 s53, s51, s50'); a(f's_add_u32 s53, s53, {OG}'); a('s_add_u32 s55, s53, 131072')
    for mt, m in ((0, MA), (1, MB)):
        for f in range(4):
            b = O + 32 * mt + 8 * f
            for r in range(8): a(f'v_mul_f32 v{b+r}, v{b+r}, v{m}')
            for r in range(4): a(f'v_cvt_pk_bf16_f32 v{b+r}, v{b+r}, v{b+4+r}')
            a(f'buffer_store_dwordx4 {vr(b,4)}, v{L16}, s[12:15], s{55 if mt else 53} offen offset:{f*1024} sc1')
    a('s_lshl_b32 s53, s46, 7'); a(f's_add_u32 s53, s53, {FLG + 32*128}')
    a(f'v_mov_b32 v{VT0}, 0'); a(f'v_mov_b32 v{VT0+1}, 1')
    a(f's_cmp_eq_u32 s{SW}, 0'); a('s_cselect_b32 s53, s53, 0x40000000')
    lastrt(a, 10)
    a('s_waitcnt vmcnt(0)'); a('s_barrier')
    a('s_mov_b64 exec, 1')
    a(f'buffer_atomic_add v{VT0+1}, v{VT0}, s[12:15], s53 offen')
    a('s_mov_b64 exec, -1')
    a(f's_add_u32 s46, s46, {NWX}'); a('s_cmp_lt_u32 s46, 64'); a('s_cbranch_scc1 LA_loop')

def gen_proj_load(a):
    a('s_load_dwordx2 s[20:21], s[0:1], 40'); a('s_load_dwordx2 s[22:23], s[0:1], 80'); a('s_load_dwordx2 s[24:25], s[0:1], 96')
    a(f's_mul_i32 s33, s{SW}, {9*4096}')
    set_vtr(a, 33, 4)
    lane_rows(a, 12, 4, 'r16', 1280)
    a('s_waitcnt lgkmcnt(0)')
    a.srd(36, 20, 5242880); a.srd(40, 22, 2211840); a.srd(16, 24, 2621440)
    a(f's_lshl_b32 s34, s47, 6'); a(f's_mul_i32 s44, s{SW}, {1024*1280}'); a('s_add_u32 s44, s44, s34')
    a(f's_mul_i32 s45, s{SW}, {448*1280}'); a('s_add_u32 s45, s45, s34')
    a('s_barrier')
    units = []
    for n in range(23):
        j = n if n < 7 else n - 7
        loc = wreg(16 + n, 7) if n < 7 else wreg(n - 7, 7)
        units.append((40 if n < 7 else 36, 45 if n < 7 else 44, [(64 * j + 32 * (i >> 1) + 2 * (i & 1)) * 1280 for i in range(4)], 12, loc))
    load_units(a, units, 9, 33, 'pw', toff=8)
    a('s_waitcnt vmcnt(0) lgkmcnt(0)'); a('s_barrier')

def gen_proj(a, fail):
    AA, AB, RING, NR = 16, 24, 32, 28
    GV, VO, VLW = 12, 14, 15
    a(f'v_bfe_u32 v{VT0+6}, v{L16}, 4, 4'); a(f'v_mul_u32_u24 v{VO}, 1280, v{VT0+6}'); a(f'v_lshrrev_b32 v{VT0+7}, 8, v{L16}'); a(f'v_lshl_add_u32 v{VO}, v{VT0+7}, 4, v{VO}')
    a(f'v_lshlrev_b32 v{VXS}, 2, v{VT0+6}')
    a(f's_lshl_b32 s34, s{SW}, 11'); a(f'v_add_u32 v{VLW}, s34, v{L16}')
    a(f's_mul_i32 s48, s{SW}, {14*1024}'); a('s_lshl_b32 s34, s58, 16'); a('s_add_u32 s48, s48, s34'); a(f's_add_u32 s48, s48, {HG}')
    a(f's_lshl_b32 s49, s{SW}, 15'); a('s_lshl_b32 s34, s58, 17'); a('s_add_u32 s49, s49, s34'); a(f's_add_u32 s49, s49, {OG}')
    a('s_mul_i32 s50, s58, 20480'); a('s_lshl_b32 s34, s47, 6'); a('s_add_u32 s50, s50, s34')
    a(f's_lshl_b32 s60, s58, 6'); a(f's_add_u32 s60, s60, {GG}')
    def gemm(nks, base_s, acc, wloc):
        def ld(ks):
            if (ks & 3) == 0: a(f's_add_u32 s56, s{base_s}, {ks*1024}')
            a(f'buffer_load_dwordx4 {vr(RING+4*(ks % NR),4)}, v{L16}, s[12:15], s56 offen offset:{(ks&3)*1024} sc1')
        for n in range(min(NR, nks)): ld(n)
        for ks in range(nks):
            k, b = wloc(ks >> 1)
            for t in range(2):
                c = vr(acc + 4 * t, 4)
                a(f'v_mfma_f32_16x16x32_bf16 {c}, {k}[{b+8*t+4*(ks&1)}:{b+8*t+4*(ks&1)+3}], {vr(RING+4*(ks % NR),4)}, {"0" if ks == 0 else c}')
            if ks + NR < nks: ld(ks + NR)
    a.label('LP_loop')
    a('s_lshl_b32 s51, s46, 17'); a('s_add_u32 s51, s51, s48')
    a('s_lshl_b32 s52, s46, 18'); a('s_add_u32 s52, s52, s49')
    a('s_lshl_b32 s53, s46, 7'); a('s_add_u32 s54, s53, s60'); a(f's_add_u32 s53, s53, {FLG + 32*128}')
    a(f'buffer_load_dword v{GV}, v{VXS}, s[12:15], s54 offen sc1')
    gemm(14, 51, AB, lambda j: wreg(16 + j, 7))
    a(f'v_sub_f32 v{VT0+6}, 1.0, v{GV}')
    for r in range(8): a(f'v_mul_f32 v{AB+r}, v{AB+r}, v{VT0+6}')
    def cond():
        a(f'v_readfirstlane_b32 s35, v{VT0+2}'); a('s_cmp_ge_u32 s35, 8')
    a(f's_cmp_lg_u32 s{SW}, 0'); a('s_cbranch_scc1 LP_p_ok')
    poll_ws(a, VT0, 53, cond, 'LP_p', fail, sleep=2)
    a('s_barrier')
    lastrt(a, 9)
    gemm(32, 52, AA, lambda j: wreg(j, 7))
    for r in range(8): a(f'v_fma_f32 v{AB+r}, v{AA+r}, v{GV}, v{AB+r}')
    lastrt(a, 10)
    for q in range(2): a(f'ds_write_b128 v{VLW}, {vr(AB+4*q,4)} offset:{q*1024}')
    a('s_waitcnt lgkmcnt(0)'); a('s_barrier')
    a(f's_cmp_ge_u32 s{SW}, 1'); a('s_cbranch_scc1 LP_skip')
    for w in range(4):
        for t in range(2): a(f'ds_read_b128 {vr(RING+8*w+4*t,4)}, v{L16} offset:{w*2048 + t*1024}')
    for r in range(8):
        a(f'v_add_f32 v{RING+r}, v{RING+r}, v{RING+8+r}'); a(f'v_add_f32 v{RING+16+r}, v{RING+16+r}, v{RING+24+r}')
    for r in range(8): a(f'v_add_f32 v{RING+r}, v{RING+r}, v{RING+16+r}')
    for i in range(4): a(f'v_cvt_pk_bf16_f32 v{RING+32+i}, v{RING+2*i}, v{RING+2*i+1}')
    a('s_mul_i32 s34, s46, 40960'); a('s_add_u32 s34, s34, s50')
    a(f'buffer_store_dwordx4 {vr(RING+32,4)}, v{VO}, s[16:19], s34 offen')
    a.label('LP_skip')
    a('s_barrier')
    a(f's_add_u32 s46, s46, {NWX//2}'); a('s_cmp_lt_u32 s46, 64'); a('s_cbranch_scc1 LP_loop')

DELAY = 0
def gen_worker(a, endlab):
    if DELAY:
        a(f's_mov_b32 s34, {DELAY}'); a.label('LW_dl'); a('s_sleep 32'); a('s_sub_u32 s34, s34, 1'); a('s_cmp_lg_u32 s34, 0'); a('s_cbranch_scc1 LW_dl')
    gen_phase1(a)
    a(f's_lshr_b32 s46, s{SU}, 5'); a(f's_and_b32 s47, s{SU}, 31')
    a('s_cmp_ge_u32 s47, 28'); a(f's_cbranch_scc1 {endlab}')
    a('s_cmp_ge_u32 s47, 20'); a('s_cbranch_scc1 LW_attn')
    gen_proj_load(a)
    rt(a)
    wait_dbg(a, D_P1B, NWG, 'LW_w1', endlab)
    rt(a)
    a('s_and_b32 s58, s46, 1'); a('s_lshr_b32 s46, s46, 1')
    gen_proj(a, endlab)
    rt(a)
    a(f's_branch {endlab}')
    a.label('LW_attn')
    a('s_sub_u32 s47, s47, 20'); a('s_lshl_b32 s47, s47, 2'); a(f's_add_u32 s47, s47, s{SW}')
    wait_dbg(a, D_P1B, NWG, 'LW_w2', endlab)
    rt(a)
    gen_attn(a, endlab)
    rt(a)
```

```python
import sys
from al import *
from layout import *
import worker as W
import importlib
C = importlib.import_module(sys.argv[2])
opts = sys.argv[3:]
W.RT = 'dbg' if 'rtdbg' in opts else 'rt' in opts
for o in opts:
    if o.startswith('wdelay='): W.DELAY = int(o[7:])
W.PREF = 'pref' in opts
a = Asm()
a('s_load_dwordx2 s[4:5], s[0:1], 104'); a('s_load_dwordx2 s[6:7], s[0:1], 112')
a('s_cmp_ge_u32 s2, 256'); a('s_cbranch_scc1 LC_end')
a('s_waitcnt lgkmcnt(0)')
a.srd(8, 4, 256); a.srd(12, 6, 0x10000000)
a('s_lshr_b32 s30, s2, 3')
a('s_and_b32 s3, s2, 7'); a(f's_cmp_lt_u32 s3, {NX}'); a('s_cbranch_scc1 L_chain')
a(f's_sub_u32 s3, s3, {NX}'); a('s_lshl_b32 s3, s3, 5'); a('s_add_u32 s30, s30, s3')
W.gen_worker(a, 'L_wend')
a.label('L_wend')
a('s_endpgm')
a.label('L_chain')
if 'hrot' in opts: a('s_add_u32 s30, s30, 1'); a('s_and_b32 s30, s30, 31')
C.gen_chain(a, stamps=('stamps' in opts), exp=opts, full=True)
k = NAME + '_kernel'
open(sys.argv[1], 'w').write(kernel_wrap([(k, a.text(), 512, 256, 102)], [(k, (256,1,1), (256,1,1), 163840)]))
import align
align.align(sys.argv[1], 'LF_step', 'LF_nored')
```

```python
from al import *
from layout import *
import math, struct
def f2u(x): return struct.unpack('<I', struct.pack('<f', x))[0]
def vr(b, n): return f'v[{b}:{b+n-1}]'
LOG2E = math.log2(math.e)
SCL = (128 ** -0.5) * LOG2E
DPPM = 'row_mask:0xf bank_mask:0xf'
SW = 31
SU = 30
L16, VTR, VXS, VXR, VT0 = 0, 1, 2, 3, 4

def wreg(i, nv):
    return ('a', 16 * i) if i < 16 else ('v', 256 - 16 * nv + 16 * (i - 16))

def load_units(a, units, nslots, ringbase_s, tag, toff=32):
    def dma(n):
        srd, sb, imms, vo, _ = units[n]
        for i in range(4):
            a(f's_add_u32 s34, s{sb}, {imms[i]}')
            a(f's_add_u32 m0, s{ringbase_s}, {(n % nslots) * 4096 + i * 1024}')
            a(f'buffer_load_dwordx4 v{vo}, s[{srd}:{srd+3}], s34 offen lds', tok=f'{tag}d{n}')
    for n in range(min(nslots, len(units))): dma(n)
    for n, u in enumerate(units):
        a.wait_tok(f'{tag}d{n}')
        k, b = u[4]
        for t in range(2):
            for rp in range(4):
                a(f'ds_read_b64_tr_b16 {k}[{b+8*t+2*rp}:{b+8*t+2*rp+1}], v{VTR} offset:{(n % nslots)*4096 + rp*1024 + t*toff}', tok=f'{tag}t{n}')
        if n + nslots < len(units):
            a.wait_tok(f'{tag}t{n}')
            dma(n + nslots)

def worker_setup(a):
    a('v_lshrrev_b32 v16, 6, v0'); a(f'v_readfirstlane_b32 s{SW}, v16')
    a('v_and_b32 v17, 63, v0')
    a(f'v_lshlrev_b32 v{L16}, 4, v17')
    a('v_lshrrev_b32 v18, 4, v17'); a('v_lshlrev_b32 v18, 1, v18'); a('v_mov_b32 v19, 0x78'); a('v_lshrrev_b32 v19, v18, v19'); a('v_xor_b32 v19, v19, v17'); a('v_and_b32 v19, 3, v19')
    a('v_lshrrev_b32 v20, 2, v17'); a(f'v_mul_u32_u24 v{VXS}, 1280, v20'); a(f'v_lshl_add_u32 v{VXS}, v19, 4, v{VXS}')
    a('v_bfe_u32 v18, v17, 2, 2'); a('v_lshlrev_b32 v18, 1, v18'); a('v_mov_b32 v19, 0x78'); a('v_lshrrev_b32 v19, v18, v19'); a('v_lshrrev_b32 v21, 4, v17'); a('v_xor_b32 v19, v19, v21'); a('v_and_b32 v19, 3, v19')
    a('v_and_b32 v20, 15, v17'); a(f'v_lshlrev_b32 v{VXR}, 6, v20'); a(f'v_lshl_add_u32 v{VXR}, v19, 4, v{VXR}')

def set_vtr(a, ring_s, sh=3):
    a(f'v_lshrrev_b32 v{VT0}, 6, v{L16}'); a(f'v_lshlrev_b32 v{VT0}, 6, v{VT0}'); a(f'v_bfe_u32 v{VT0+1}, v{L16}, 4, 2')
    a(f'v_lshl_add_u32 v{VTR}, v{VT0+1}, {sh}, v{VT0}'); a(f'v_add_u32 v{VTR}, s{ring_s}, v{VTR}')

def lane_rows(a, dst, gmul, rfun, stride):
    t = VT0
    a(f'v_lshrrev_b32 v{t}, 8, v{L16}'); a(f'v_mul_u32_u24 v{t}, {gmul}, v{t}')
    a(f'v_bfe_u32 v{t+1}, v{L16}, 6, 2')
    if rfun == 'r': a(f'v_add_u32 v{t}, v{t}, v{t+1}')
    else:
        a(f'v_lshrrev_b32 v{t+2}, 1, v{t+1}'); a(f'v_add_u32 v{t}, v{t}, v{t+2}'); a(f'v_and_b32 v{t+1}, 1, v{t+1}'); a(f'v_lshl_add_u32 v{t}, v{t+1}, 4, v{t}')
    a(f's_mov_b32 s34, {stride}'); a(f'v_mul_lo_u32 v{t}, v{t}, s34'); a(f'v_bfe_u32 v{t+1}, v{L16}, 4, 2'); a(f'v_lshl_add_u32 v{dst}, v{t+1}, 4, v{t}')

XB = 40960
PREF = False
NROUND = -(-64 // NWX)
RT = True
RTOFF = FLG + 0x200000
def rt(a, t=VT0+6):
    if RT == 'dbg':
        a('s_memrealtime s[72:73]'); a('s_waitcnt lgkmcnt(0)')
        a(f'v_mov_b32 v{t}, s75'); a(f'v_mov_b32 v{t+1}, s72'); a('s_add_u32 s75, s75, 4')
        a(f's_cmp_eq_u32 s{SW}, 0'); a('s_cselect_b32 s74, 0, 0x40000000')
        a('s_mov_b64 exec, 1')
        a(f'buffer_atomic_umax v{t+1}, v{t}, s[8:11], s74 offen')
        a('s_mov_b64 exec, -1')
        return
    if not RT: return
    a('s_memrealtime s[72:73]'); a('s_waitcnt lgkmcnt(0)')
    a(f's_lshl_b32 s74, s2, 2'); a(f's_add_u32 s74, s74, s{SW}'); a('s_lshl_b32 s74, s74, 7'); a(f's_add_u32 s74, s74, {RTOFF}')
    a('s_add_u32 s74, s74, s75'); a('s_add_u32 s75, s75, 4')
    a(f'v_mov_b32 v{t}, 0'); a(f'v_mov_b32 v{t+1}, s72')
    a(f'buffer_store_dword v{t+1}, v{t}, s[12:15], s74 offen')
def gen_gemm1(a, kind, P):
    stride = 3456 if kind == 'h' else 8192
    ostride = {'kq': 262144, 'v': 262144, 'h': 131072}[kind]
    WO = 12
    XA = 13
    ACC = 16
    XF = 48
    OUT = 80
    a(f's_mul_i32 s33, s{SW}, {7*4096}'); a(f's_add_u32 s33, s33, {XB}')
    set_vtr(a, 33)
    lane_rows(a, WO, 8, 'r', stride)
    a(f's_mul_i32 s50, s{SW}, 10240')
    a(f's_mul_i32 s51, s{SW}, 320')
    def xdma(n, buf_s, tile_s, tok):
        return [f's_add_u32 s34, s{tile_s}, {(n >> 1) * 64 + (n & 1) * 20480}', f's_add_u32 m0, s{buf_s}, {n * 1024}',
                (f'buffer_load_dwordx4 v{VXS}, s[16:19], s34 offen lds', tok)]
    def emit(p):
        if isinstance(p, tuple): a(p[0], tok=p[1])
        else: a(p)
    a(f's_mul_i32 s52, s46, 40960'); a('s_add_u32 s52, s52, s51'); a('s_mul_i32 s54, s47, 40960'); a('s_mov_b32 s53, s50')
    a('s_barrier')
    for n in range(10):
        for p in xdma(n, 53, 52, f'{P}x'): emit(p)
    units = []
    for j in range(10):
        for pr in range(2):
            units.append((36 + 4 * pr, 44 + pr, [(64 * j + 32 * (i >> 1) + 4 * (i & 1)) * stride for i in range(4)], WO, wreg(2 * j + pr, 4)))
    load_units(a, units, 7, 33, P + 'w')
    a('s_waitcnt vmcnt(0) lgkmcnt(0)'); a('s_barrier')
    rt(a)
    a('s_add_u32 s52, s52, s54'); a(f's_add_u32 s53, s50, {XB}')
    for n in range(10):
        for p in xdma(n, 53, 52, f'{P}x1'): emit(p)
    a('s_add_u32 s52, s52, s54'); a(f's_add_u32 s53, s50, {2*XB}')
    a(f's_mov_b32 s55, 0')
    a(f's_mul_i32 s56, s46, {ostride}'); a('s_add_u32 s56, s56, s48'); a(f's_mul_i32 s57, s47, {ostride}')
    a.label(f'{P}_tile')
    a(f'v_add_u32 v{XA}, s55, v{VXR}')
    side = []
    for n in range(10): side += [xdma(n, 53, 52, f'{P}xn')]
    def rdx(ks):
        for mt in range(2): a(f'ds_read_b128 {vr(XF + 8*(ks % 4) + 4*mt, 4)}, v{XA} offset:{(2*ks+mt)*1024}')
    rdx(0); rdx(1); rdx(2)
    for ks in range(20):
        j, kh = ks >> 1, ks & 1
        n = 0
        for pr in range(2):
            k, b = wreg(2 * j + pr, 4)
            for t in range(2):
                Wf = f'{k}[{b+8*t+4*kh}:{b+8*t+4*kh+3}]'
                for mt in range(2):
                    c = vr(ACC + 16 * mt + 8 * pr + 4 * t, 4); Xf = vr(XF + 8 * (ks % 4) + 4 * mt, 4)
                    A_, B_ = (Xf, Wf) if kind == 'v' else (Wf, Xf)
                    a(f'v_mfma_f32_16x16x32_bf16 {c}, {A_}, {B_}, {"0" if ks == 0 else c}')
                    n += 1
                    if n == 1 and ks + 3 < 20: rdx(ks + 3)
                    if n == 4 and side and ks >= 1:
                        for p in side.pop(0): emit(p)
    if kind == 'kq':
        for mt in range(2):
            for pr in range(2):
                o = OUT + 8 * mt + 4 * pr; b = ACC + 16 * mt + 8 * pr
                for r in range(4): a(f'v_cvt_pk_bf16_f32 v{o+r}, v{b+r}, v{b+4+r}')
                if mt == 1 and pr == 0: a('s_add_u32 s35, s56, 4096')
                a(f'buffer_store_dwordx4 {vr(o,4)}, v{L16}, s[12:15], s{35 if mt else 56} offen offset:{pr*1024} sc1')
    elif kind == 'v':
        for T in range(4):
            o = OUT + 4 * T
            for mt in range(2):
                b = ACC + 16 * mt + 4 * T
                a(f'v_cvt_pk_bf16_f32 v{o+2*mt}, v{b}, v{b+1}'); a(f'v_cvt_pk_bf16_f32 v{o+2*mt+1}, v{b+2}, v{b+3}')
            a(f'buffer_store_dwordx4 {vr(o,4)}, v{L16}, s[12:15], s56 offen offset:{T*1024} sc1')
    else:
        a(f's_mov_b32 s35, {f2u(-LOG2E):#x}')
        for mt in range(2):
            G = ACC + 16 * mt; U = G + 8; E = OUT + 8
            for r in range(8): a(f'v_mul_f32 v{E+r}, s35, v{G+r}')
            for r in range(8): a(f'v_exp_f32 v{E+r}, v{E+r}')
            for r in range(8): a(f'v_mul_f32 v{G+r}, v{G+r}, v{U+r}')
            for r in range(8): a(f'v_add_f32 v{E+r}, 1.0, v{E+r}')
            for r in range(8): a(f'v_rcp_f32 v{E+r}, v{E+r}')
            for r in range(8): a(f'v_mul_f32 v{G+r}, v{G+r}, v{E+r}')
            o = OUT + 4 * mt
            for r in range(4): a(f'v_cvt_pk_bf16_f32 v{o+r}, v{G+r}, v{G+4+r}')
            if mt == 1: a('s_add_u32 s58, s56, 65536')
            a(f'buffer_store_dwordx4 {vr(o,4)}, v{L16}, s[12:15], s{58 if mt else 56} offen sc1')
    nst = 2 if kind == 'h' else 4
    a('s_add_u32 s46, s46, s47'); a('s_add_u32 s52, s52, s54'); a('s_add_u32 s56, s56, s57')
    a(f's_add_u32 s53, s55, s50')
    a(f's_add_u32 s55, s55, {XB}'); a(f's_cmp_eq_u32 s55, {3*XB}'); a('s_cselect_b32 s55, 0, s55')
    a(f's_waitcnt vmcnt({10 + nst})')
    a('s_barrier')
    if kind != 'h':
        a('s_add_u32 s59, s59, 1')
        a(f's_cmp_lg_u32 s{SW}, 0'); a(f's_cbranch_scc1 {P}_nosig')
        a(f's_cmp_eq_u32 s59, {KVROUNDS[0]+1}'); a(f's_cselect_b32 s35, {D_KVR}, 0')
        a(f's_cmp_eq_u32 s59, {KVROUNDS[1]+1}'); a(f's_cselect_b32 s35, {D_KVR+4}, s35')
        a('s_cmp_eq_u32 s35, 0'); a(f's_cbranch_scc1 {P}_nosig')
        a(f'v_mov_b32 v{VT0}, s35'); a(f'v_mov_b32 v{VT0+1}, 1')
        a('s_mov_b64 exec, 1')
        a(f'buffer_atomic_add v{VT0+1}, v{VT0}, s[8:11], 0 offen')
        a('s_mov_b64 exec, -1')
        a.label(f'{P}_nosig')
    a('s_cmp_lt_u32 s46, 64'); a(f's_cbranch_scc1 {P}_tile')
    a('s_waitcnt vmcnt(0)')

def signal(a, off):
    lab = a.newlabel('LSG')
    a('s_barrier')
    a(f's_cmp_lg_u32 s{SW}, 0'); a(f's_cbranch_scc1 {lab}')
    a(f'v_mov_b32 v{VT0}, {off}'); a(f'v_mov_b32 v{VT0+1}, 1')
    a('s_mov_b64 exec, 1')
    a(f'buffer_atomic_add v{VT0+1}, v{VT0}, s[8:11], 0 offen')
    a('s_mov_b64 exec, -1')
    a.label(lab)

def wait_dbg(a, off, target, lab, fail, t=VT0):
    a(f's_cmp_lg_u32 s{SW}, 0'); a(f's_cbranch_scc1 {lab}_ok')
    a(f'v_mov_b32 v{t}, {off}'); a('s_mov_b32 s34, 0')
    a.label(lab)
    a(f'buffer_load_dword v{t+1}, v{t}, s[8:11], 0 offen sc1')
    a('s_add_u32 s34, s34, 1'); a('s_cmp_gt_u32 s34, 2000000'); a(f's_cbranch_scc1 {fail}')
    a(f'v_readfirstlane_b32 s35, v{t+1}'); a(f's_cmp_ge_u32 s35, {target}'); a(f's_cbranch_scc1 {lab}_ok')
    a('s_sleep 16'); a(f's_branch {lab}')
    a.label(lab + '_ok')
    a('s_barrier')

def kv_wait(a, need_s, ready_s, lab, fail, t, l16):
    a(f'v_lshrrev_b32 v{t}, 2, v{l16}'); a(f'v_min_u32 v{t}, 12, v{t}'); a('s_mov_b32 s34, 0')
    a.label(lab)
    a(f'buffer_load_dword v{t+1}, v{t}, s[8:11], 0 offen offset:{D_KVR} sc1')
    a('s_add_u32 s34, s34, 1'); a('s_cmp_gt_u32 s34, 2000000'); a(f's_cbranch_scc1 {fail}')
    a(f'v_cmp_gt_u32 vcc, {NWG}, v{t+1}')
    a('s_ff1_i32_b64 s35, vcc'); a('s_lshl_b32 s35, s35, 3'); a(f's_lshr_b32 s{ready_s}, {(64 << 24) | (KVROUNDS[1]*NWX << 16) | (KVROUNDS[0]*NWX << 8):#x}, s35'); a(f's_and_b32 s{ready_s}, s{ready_s}, 255')
    a(f's_cmp_gt_u32 s{ready_s}, s{need_s}'); a(f's_cbranch_scc1 {lab}_ok')
    a('s_sleep 8'); a(f's_branch {lab}')
    a.label(lab + '_ok')

def gen_gate(a, nwaves):
    GW, XF, D = 16, 96, 176
    a(f'v_lshrrev_b32 v{VT0}, 8, v{L16}'); a(f'v_lshlrev_b32 v{VT0}, 4, v{VT0}')
    for ks in range(20): a(f'buffer_load_dwordx4 {vr(GW+4*ks,4)}, v{VT0}, s[36:39], 0 offen offset:{64*ks}')
    a(f'v_bfe_u32 v{VT0+1}, v{L16}, 4, 4'); a(f'v_mul_u32_u24 v{VT0+2}, 1280, v{VT0+1}'); a(f'v_add_u32 v{VT0+2}, v{VT0+2}, v{VT0}')
    a(f'v_lshlrev_b32 v{VT0+3}, 2, v{VT0+1}')
    a(f's_mov_b32 s35, {f2u(-LOG2E):#x}')
    a.label('LG_loop')
    a('s_mul_i32 s50, s46, 20480'); a('s_lshl_b32 s51, s46, 6'); a(f's_add_u32 s51, s51, {GG}')
    for ks in range(20): a(f'buffer_load_dwordx4 {vr(XF+4*ks,4)}, v{VT0+2}, s[16:19], s50 offen offset:{64*ks}')
    for ks in range(20): a(f'v_mfma_f32_16x16x32_bf16 {vr(D,4)}, {vr(GW+4*ks,4)}, {vr(XF+4*ks,4)}, {"0" if ks == 0 else vr(D,4)}')
    a(f'v_mul_f32 v{D}, s35, v{D}'); a(f'v_exp_f32 v{D}, v{D}'); a(f'v_add_f32 v{D}, 1.0, v{D}'); a(f'v_rcp_f32 v{D}, v{D}')
    a('s_mov_b64 exec, 0xffff')
    a(f'buffer_store_dword v{D}, v{VT0+3}, s[12:15], s51 offen sc1')
    a('s_mov_b64 exec, -1')
    a(f's_add_u32 s46, s46, {nwaves}'); a('s_cmp_lt_u32 s46, 128'); a('s_cbranch_scc1 LG_loop')
    a('s_waitcnt vmcnt(0)')

def gen_phase1(a):
    a('s_load_dwordx2 s[20:21], s[0:1], 0')
    a('s_load_dwordx4 s[24:27], s[0:1], 24')
    a('s_load_dwordx2 s[22:23], s[0:1], 16')
    a('s_load_dwordx4 s[60:63], s[0:1], 64')
    a('s_load_dwordx2 s[64:65], s[0:1], 88')
    a('s_load_dwordx2 s[28:29], s[0:1], 40')
    worker_setup(a)
    a('s_mov_b32 s75, 16' if RT == 'dbg' else 's_mov_b32 s75, 0'); rt(a)
    a(f'v_mov_b32 v{VT0}, 0'); a(f'v_lshrrev_b32 v{VT0+1}, 2, v{L16}')
    a(f's_lshl_b32 s34, s{SU}, 7'); a(f's_add_u32 s34, s34, {FLG}')
    a('s_mov_b64 exec, 0xffffffff')
    a(f'buffer_store_dword v{VT0}, v{VT0+1}, s[12:15], s34 offen sc1')
    a('s_mov_b64 exec, -1')
    a('s_waitcnt lgkmcnt(0)')
    a.srd(16, 20, 2621440)
    if PREF:
        per = 5242880 // (NWG * 4)
        a.srd(36, 22, 5242880); a.srd(40, 28, 5242880)
        a(f's_lshl_b32 s34, s{SU}, 2'); a(f's_add_u32 s34, s34, s{SW}'); a(f's_mul_i32 s34, s34, {per}'); a('s_and_b32 s34, s34, 0xffffff80'); a('s_add_u32 s35, s34, 4096')
        for srd in (36, 40):
            for i in range(7): a(f'buffer_load_dwordx4 v[{96+4*i}:{99+4*i}], v{L16}, s[{srd}:{srd+3}], s{34 if i < 4 else 35} offen offset:{(i%4)*1024} nt')
    a(f's_mul_i32 s66, s{SU}, {65536 // NWX + 1}'); a('s_lshr_b32 s66, s66, 16'); a(f's_mul_i32 s34, s66, {NWX}'); a(f's_sub_u32 s67, s{SU}, s34')
    a('s_mov_b32 s46, s67'); a(f's_mov_b32 s47, {NWX}')
    a('s_and_b32 s68, s66, 15'); a('s_lshl_b32 s44, s68, 9'); a(f's_lshl_b32 s34, s{SW}, 7'); a('s_add_u32 s44, s44, s34'); a('s_add_u32 s45, s44, 64')
    a('s_lshl_b32 s69, s68, 14'); a(f's_lshr_b32 s34, s{SW}, 1'); a('s_lshl_b32 s34, s34, 13'); a('s_add_u32 s69, s69, s34')
    a(f's_and_b32 s70, s{SW}, 1'); a('s_mov_b32 s59, 0')
    a('s_cmp_ge_u32 s66, 16'); a('s_cbranch_scc1 LW_v')
    a.srd(36, 24, 5242880); a.srd(40, 24, 5242880)
    a('s_lshl_b32 s48, s70, 11'); a('s_add_u32 s48, s48, s69'); a(f's_add_u32 s48, s48, {KXG}')
    a('s_mov_b32 s71, 0')
    a.label('LW_kq')
    gen_gemm1(a, 'kq', 'LK')
    a('s_cmp_eq_u32 s71, 1'); a('s_cbranch_scc1 LW_p1b_done')
    a('s_branch LW_p1a_done')
    a.label('LW_v')
    a.srd(36, 26, 5242880); a.srd(40, 26, 5242880)
    a('s_lshl_b32 s48, s70, 12'); a('s_add_u32 s48, s48, s69'); a(f's_add_u32 s48, s48, {VXG}')
    gen_gemm1(a, 'v', 'LV')
    a.label('LW_p1a_done')
    signal(a, D_KVR + 8)
    rt(a)
    a('s_mov_b32 s46, s67'); a(f's_mov_b32 s47, {NWX}')
    a('s_cmp_ge_u32 s66, 16'); a('s_cbranch_scc1 LW_h')
    a.srd(36, 22, 5242880); a.srd(40, 22, 5242880)
    a('s_lshl_b32 s48, s70, 11'); a('s_add_u32 s48, s48, s69'); a(f's_add_u32 s48, s48, {QXG}')
    a('s_mov_b32 s71, 1')
    a('s_branch LW_kq')
    a.label('LW_h')
    a('s_cmp_ge_u32 s66, 30'); a('s_cbranch_scc1 LW_gate')
    a.srd(36, 60, 2211840); a.srd(40, 62, 2211840)
    a('s_lshl_b32 s34, s68, 2'); a(f's_add_u32 s34, s34, s{SW}')
    a('s_min_u32 s35, s34, 53'); a('s_lshl_b32 s44, s35, 6'); a('s_mov_b32 s45, s44')
    a('s_lshl_b32 s48, s34, 10'); a(f's_add_u32 s48, s48, {HG}')
    gen_gemm1(a, 'h', 'LH')
    a('s_branch LW_p1b_done')
    a.label('LW_gate')
    a.srd(36, 64, 1280)
    a(f's_sub_u32 s46, s{SU}, {30*NWX}'); a('s_lshl_b32 s46, s46, 2'); a(f's_add_u32 s46, s46, s{SW}')
    gen_gate(a, 8 * NWX)
    a.label('LW_p1b_done')
    signal(a, D_P1B)
    rt(a)


def lastrt(a, slot):
    if RT is not True: return
    a('s_mov_b32 s76, s75' if False else f's_mov_b32 s71, s75'); a(f's_mov_b32 s75, {4*slot}'); rt(a); a('s_mov_b32 s75, s71')

def poll_ws(a, t, soff, cond_fn, lab, fail, width=1, sleep=4):
    a(f'v_and_b32 v{t}, {0 if width == 1 else 16}, v{L16}'); a('s_mov_b32 s34, 0')
    a.label(lab)
    if width == 1: a(f'buffer_load_dword v{t+2}, v{t}, s[12:15], s{soff} offen sc1')
    else: a(f'buffer_load_dwordx4 {vr(t+2,4)}, v{t}, s[12:15], s{soff} offen sc1')
    a('s_add_u32 s34, s34, 1'); a('s_cmp_gt_u32 s34, 4000000'); a(f's_cbranch_scc1 {fail}')
    cond_fn()
    a(f's_cbranch_scc1 {lab}_ok')
    a(f's_sleep {sleep}'); a(f's_branch {lab}')
    a.label(lab + '_ok')

def gen_attn(a, fail):
    QF, KF, VF, KM, VM, SS, O, T = 16, 48, 80, 112, 128, 136, 160, 224
    SAA, SAB, SBB, SMA, SMB = SS, SS + 4, SS + 8, SS + 12, SS + 16
    a(f's_mov_b32 s54, {f2u(SCL):#x}')
    a(f'v_bfe_u32 v{T}, v{L16}, 4, 4'); a(f'v_lshrrev_b32 v{T+1}, 8, v{L16}'); a(f'v_lshlrev_b32 v{T+1}, 2, v{T+1}')
    for r in range(4):
        a(f'v_add_u32 v{T+2}, {r}, v{T+1}'); a(f'v_cmp_le_u32 s[{76+2*r}:{77+2*r}], v{T+2}, v{T}')
    a(f'v_mov_b32 v{VT0+8}, 0xff800000'); a(f'v_lshrrev_b32 v{VT0+9}, 1, v{L16}')
    NEG, L8 = VT0 + 8, VT0 + 9
    a('s_lshl_b32 s48, s47, 13'); a('s_lshl_b32 s49, s47, 7'); a(f's_add_u32 s49, s49, {FLG}'); a('s_lshl_b32 s50, s47, 12')
    a.label('LA_loop')
    a('s_lshl_b32 s51, s46, 18'); a('s_add_u32 s52, s51, s48')
    for nm, base, off in (('q', QF, QXG), ('k', KF, KXG), ('v', VF, VXG)):
        a(f's_add_u32 s53, s52, {off}'); a(f's_add_u32 s55, s53, 4096')
        for i in range(8): a(f'buffer_load_dwordx4 {vr(base+4*i,4)}, v{L16}, s[12:15], s{53 if i < 4 else 55} offen offset:{(i&3)*1024} sc1')
    for (d, kt, qt) in ((SAA, 0, 0), (SAB, 0, 1), (SBB, 1, 1)):
        for f in range(4): a(f'v_mfma_f32_16x16x32_bf16 {vr(d,4)}, {vr(KF+16*kt+4*f,4)}, {vr(QF+16*qt+4*f,4)}, {"0" if f == 0 else vr(d,4)}')
    for d in (SAA, SBB):
        for r in range(4): a(f'v_cndmask_b32 v{d+r}, v{NEG}, v{d+r}, s[{76+2*r}:{77+2*r}]')
    MA, MB, M2 = T, T + 1, T + 2
    a(f'v_max3_f32 v{MA}, v{SAA}, v{SAA+1}, v{SAA+2}'); a(f'v_max_f32 v{MA}, v{MA}, v{SAA+3}')
    a(f'v_max3_f32 v{MB}, v{SAB}, v{SAB+1}, v{SAB+2}'); a(f'v_max3_f32 v{MB}, v{MB}, v{SAB+3}, v{SBB}'); a(f'v_max3_f32 v{MB}, v{MB}, v{SBB+1}, v{SBB+2}'); a(f'v_max_f32 v{MB}, v{MB}, v{SBB+3}')
    def cond():
        a(f'v_min3_u32 v{VT0+2}, v{VT0+2}, v{VT0+3}, v{VT0+4}'); a(f'v_min_u32 v{VT0+2}, v{VT0+2}, v{VT0+5}')
        a(f'v_readlane_b32 s35, v{VT0+2}, 0'); a(f'v_readlane_b32 s56, v{VT0+2}, 1'); a('s_min_u32 s35, s35, s56'); a('s_cmp_gt_u32 s35, s46')
    poll_ws(a, VT0, 49, cond, 'LA_p', fail, width=4)
    lastrt(a, 9)
    a(f's_add_u32 s53, s52, {KVM}'); a('s_add_u32 s55, s53, 4096')
    for f in range(4): a(f'buffer_load_dwordx4 {vr(KM+4*f,4)}, v{L16}, s[12:15], s53 offen offset:{f*1024} sc1')
    for w in range(4): a(f'buffer_load_dwordx2 {vr(VM+2*w,2)}, v{L8}, s[12:15], s55 offen offset:{w*512} sc1')
    for f in range(4):
        for (d, qt) in ((SMA, 0), (SMB, 1)):
            a(f'v_mfma_f32_16x16x32_bf16 {vr(d,4)}, {vr(KM+4*f,4)}, {vr(QF+16*qt+4*f,4)}, {"0" if f == 0 else vr(d,4)}')
    a(f'v_max3_f32 v{MA}, v{MA}, v{SMA}, v{SMA+1}'); a(f'v_max3_f32 v{MB}, v{MB}, v{SMB}, v{SMB+1}')
    def xred(op, regs):
        for sw in ('v_permlane16_swap_b32', 'v_permlane32_swap_b32'):
            for i, m in enumerate(regs): a(f'v_mov_b32 v{M2+i}, v{m}')
            for i, m in enumerate(regs): a(f'{sw} v{m}, v{M2+i}')
            for i, m in enumerate(regs): a(f'{op} v{m}, v{m}, v{M2+i}')
    xred('v_max_f32', [MA, MB])
    a(f'v_mul_f32 v{MA}, s54, v{MA}'); a(f'v_mul_f32 v{MB}, s54, v{MB}')
    va = [SAA + r for r in range(4)] + [SMA, SMA + 1]
    vb = [SAB + r for r in range(8)] + [SMB, SMB + 1]
    for x in va: a(f'v_fma_f32 v{x}, v{x}, s54, -v{MA}')
    for x in vb: a(f'v_fma_f32 v{x}, v{x}, s54, -v{MB}')
    for x in va + vb: a(f'v_exp_f32 v{x}, v{x}')
    BA, BB, PA, PB = T + 8, T + 12, T + 16, T + 20
    a(f'v_cvt_pk_bf16_f32 v{BA}, v{SAA}, v{SAA+1}'); a(f'v_cvt_pk_bf16_f32 v{BA+1}, v{SAA+2}, v{SAA+3}'); a(f'v_mov_b32 v{BA+2}, 0'); a(f'v_mov_b32 v{BA+3}, 0')
    for i in range(4): a(f'v_cvt_pk_bf16_f32 v{BB+i}, v{SAB+2*i}, v{SAB+2*i+1}')
    for (p, sm) in ((PA, SMA), (PB, SMB)):
        a(f'v_cvt_pk_bf16_f32 v{p}, v{sm}, v{sm+1}'); a(f'v_mov_b32 v{p+1}, 0'); a(f'v_mov_b32 v{p+2}, 0'); a(f'v_cvt_pk_bf16_f32 v{p+3}, v{sm}, v{sm+1}')
    sums = []
    for (m, vals) in ((MA, va), (MB, vb)):
        sums.append(f'v_add_f32 v{m}, v{vals[0]}, v{vals[1]}')
        for x in vals[2:]: sums.append(f'v_add_f32 v{m}, v{m}, v{x}')
    for Tt in range(8):
        for mt, bt in ((0, BA), (1, BB)):
            a(f'v_mfma_f32_16x16x32_bf16 {vr(O+32*mt+4*Tt,4)}, {vr(VF+4*Tt,4)}, {vr(bt,4)}, 0')
            if sums: a(sums.pop(0))
    xred('v_add_f32', [MA, MB])
    a(f'v_rcp_f32 v{MA}, v{MA}'); a(f'v_rcp_f32 v{MB}, v{MB}')
    for mt, pm in ((0, PA), (1, PB)):
        for Tt in range(8):
            d = vr(O + 32 * mt + 4 * Tt, 4)
            a(f'v_mfma_f32_16x16x16_bf16 {d}, {vr(VM+2*(Tt>>1),2)}, {vr(pm+2*(Tt&1),2)}, {d}')
    a('s_add_u32 s53, s51, s50'); a(f's_add_u32 s53, s53, {OG}'); a('s_add_u32 s55, s53, 131072')
    for mt, m in ((0, MA), (1, MB)):
        for f in range(4):
            b = O + 32 * mt + 8 * f
            for r in range(8): a(f'v_mul_f32 v{b+r}, v{b+r}, v{m}')
            for r in range(4): a(f'v_cvt_pk_bf16_f32 v{b+r}, v{b+r}, v{b+4+r}')
            a(f'buffer_store_dwordx4 {vr(b,4)}, v{L16}, s[12:15], s{55 if mt else 53} offen offset:{f*1024} sc1')
    a('s_lshl_b32 s53, s46, 7'); a(f's_add_u32 s53, s53, {FLG + 32*128}')
    a(f'v_mov_b32 v{VT0}, 0'); a(f'v_mov_b32 v{VT0+1}, 1')
    a(f's_cmp_eq_u32 s{SW}, 0'); a('s_cselect_b32 s53, s53, 0x40000000')
    lastrt(a, 10)
    a('s_waitcnt vmcnt(0)'); a('s_barrier')
    a('s_mov_b64 exec, 1')
    a(f'buffer_atomic_add v{VT0+1}, v{VT0}, s[12:15], s53 offen')
    a('s_mov_b64 exec, -1')
    a(f's_add_u32 s46, s46, {NWX}'); a('s_cmp_lt_u32 s46, 64'); a('s_cbranch_scc1 LA_loop')

def gen_proj_load(a):
    a('s_load_dwordx2 s[20:21], s[0:1], 40'); a('s_load_dwordx2 s[22:23], s[0:1], 80'); a('s_load_dwordx2 s[24:25], s[0:1], 96')
    a(f's_mul_i32 s33, s{SW}, {9*4096}')
    set_vtr(a, 33, 4)
    lane_rows(a, 12, 4, 'r16', 1280)
    a('s_waitcnt lgkmcnt(0)')
    a.srd(36, 20, 5242880); a.srd(40, 22, 2211840); a.srd(16, 24, 2621440)
    a(f's_lshl_b32 s34, s47, 6'); a(f's_mul_i32 s44, s{SW}, {1024*1280}'); a('s_add_u32 s44, s44, s34')
    a(f's_mul_i32 s45, s{SW}, {448*1280}'); a('s_add_u32 s45, s45, s34')
    a('s_barrier')
    units = []
    for n in range(23):
        j = n if n < 7 else n - 7
        loc = wreg(16 + n, 7) if n < 7 else wreg(n - 7, 7)
        units.append((40 if n < 7 else 36, 45 if n < 7 else 44, [(64 * j + 32 * (i >> 1) + 2 * (i & 1)) * 1280 for i in range(4)], 12, loc))
    load_units(a, units, 9, 33, 'pw', toff=8)
    a('s_waitcnt vmcnt(0) lgkmcnt(0)'); a('s_barrier')

def gen_proj(a, fail):
    AA, AB, RING, NR = 16, 24, 32, 28
    GV, VO, VLW = 12, 14, 15
    a(f'v_bfe_u32 v{VT0+6}, v{L16}, 4, 4'); a(f'v_mul_u32_u24 v{VO}, 1280, v{VT0+6}'); a(f'v_lshrrev_b32 v{VT0+7}, 8, v{L16}'); a(f'v_lshl_add_u32 v{VO}, v{VT0+7}, 4, v{VO}')
    a(f'v_lshlrev_b32 v{VXS}, 2, v{VT0+6}')
    a(f's_lshl_b32 s34, s{SW}, 11'); a(f'v_add_u32 v{VLW}, s34, v{L16}')
    a(f's_mul_i32 s48, s{SW}, {14*1024}'); a('s_lshl_b32 s34, s58, 16'); a('s_add_u32 s48, s48, s34'); a(f's_add_u32 s48, s48, {HG}')
    a(f's_lshl_b32 s49, s{SW}, 15'); a('s_lshl_b32 s34, s58, 17'); a('s_add_u32 s49, s49, s34'); a(f's_add_u32 s49, s49, {OG}')
    a('s_mul_i32 s50, s58, 20480'); a('s_lshl_b32 s34, s47, 6'); a('s_add_u32 s50, s50, s34')
    a(f's_lshl_b32 s60, s58, 6'); a(f's_add_u32 s60, s60, {GG}')
    def gemm(nks, base_s, acc, wloc):
        def ld(ks):
            if (ks & 3) == 0: a(f's_add_u32 s56, s{base_s}, {ks*1024}')
            a(f'buffer_load_dwordx4 {vr(RING+4*(ks % NR),4)}, v{L16}, s[12:15], s56 offen offset:{(ks&3)*1024} sc1')
        for n in range(min(NR, nks)): ld(n)
        for ks in range(nks):
            k, b = wloc(ks >> 1)
            for t in range(2):
                c = vr(acc + 4 * t, 4)
                a(f'v_mfma_f32_16x16x32_bf16 {c}, {k}[{b+8*t+4*(ks&1)}:{b+8*t+4*(ks&1)+3}], {vr(RING+4*(ks % NR),4)}, {"0" if ks == 0 else c}')
            if ks + NR < nks: ld(ks + NR)
    a.label('LP_loop')
    a('s_lshl_b32 s51, s46, 17'); a('s_add_u32 s51, s51, s48')
    a('s_lshl_b32 s52, s46, 18'); a('s_add_u32 s52, s52, s49')
    a('s_lshl_b32 s53, s46, 7'); a('s_add_u32 s54, s53, s60'); a(f's_add_u32 s53, s53, {FLG + 32*128}')
    a(f'buffer_load_dword v{GV}, v{VXS}, s[12:15], s54 offen sc1')
    gemm(14, 51, AB, lambda j: wreg(16 + j, 7))
    a(f'v_sub_f32 v{VT0+6}, 1.0, v{GV}')
    for r in range(8): a(f'v_mul_f32 v{AB+r}, v{AB+r}, v{VT0+6}')
    def cond():
        a(f'v_readfirstlane_b32 s35, v{VT0+2}'); a('s_cmp_ge_u32 s35, 8')
    a(f's_cmp_lg_u32 s{SW}, 0'); a('s_cbranch_scc1 LP_p_ok')
    poll_ws(a, VT0, 53, cond, 'LP_p', fail, sleep=2)
    a('s_barrier')
    lastrt(a, 9)
    gemm(32, 52, AA, lambda j: wreg(j, 7))
    for r in range(8): a(f'v_fma_f32 v{AB+r}, v{AA+r}, v{GV}, v{AB+r}')
    lastrt(a, 10)
    for q in range(2): a(f'ds_write_b128 v{VLW}, {vr(AB+4*q,4)} offset:{q*1024}')
    a('s_waitcnt lgkmcnt(0)'); a('s_barrier')
    a(f's_cmp_ge_u32 s{SW}, 1'); a('s_cbranch_scc1 LP_skip')
    for w in range(4):
        for t in range(2): a(f'ds_read_b128 {vr(RING+8*w+4*t,4)}, v{L16} offset:{w*2048 + t*1024}')
    for r in range(8):
        a(f'v_add_f32 v{RING+r}, v{RING+r}, v{RING+8+r}'); a(f'v_add_f32 v{RING+16+r}, v{RING+16+r}, v{RING+24+r}')
    for r in range(8): a(f'v_add_f32 v{RING+r}, v{RING+r}, v{RING+16+r}')
    for i in range(4): a(f'v_cvt_pk_bf16_f32 v{RING+32+i}, v{RING+2*i}, v{RING+2*i+1}')
    a('s_mul_i32 s34, s46, 40960'); a('s_add_u32 s34, s34, s50')
    a(f'buffer_store_dwordx4 {vr(RING+32,4)}, v{VO}, s[16:19], s34 offen')
    a.label('LP_skip')
    a('s_barrier')
    a(f's_add_u32 s46, s46, {NWX//2}'); a('s_cmp_lt_u32 s46, 64'); a('s_cbranch_scc1 LP_loop')

DELAY = 0
def gen_worker(a, endlab):
    if DELAY:
        a(f's_mov_b32 s34, {DELAY}'); a.label('LW_dl'); a('s_sleep 32'); a('s_sub_u32 s34, s34, 1'); a('s_cmp_lg_u32 s34, 0'); a('s_cbranch_scc1 LW_dl')
    gen_phase1(a)
    a(f's_lshr_b32 s46, s{SU}, 5'); a(f's_and_b32 s47, s{SU}, 31')
    a('s_cmp_ge_u32 s47, 28'); a(f's_cbranch_scc1 {endlab}')
    a('s_cmp_ge_u32 s47, 20'); a('s_cbranch_scc1 LW_attn')
    gen_proj_load(a)
    rt(a)
    wait_dbg(a, D_P1B, NWG, 'LW_w1', endlab)
    rt(a)
    a('s_and_b32 s58, s46, 1'); a('s_lshr_b32 s46, s46, 1')
    gen_proj(a, endlab)
    rt(a)
    a(f's_branch {endlab}')
    a.label('LW_attn')
    a('s_sub_u32 s47, s47, 20'); a('s_lshl_b32 s47, s47, 2'); a(f's_add_u32 s47, s47, s{SW}')
    wait_dbg(a, D_P1B, NWG, 'LW_w2', endlab)
    rt(a)
    gen_attn(a, endlab)
    rt(a)
```

```python
from al import *
from layout import *
import math, struct
def f2u(x): return struct.unpack('<I', struct.pack('<f', x))[0]
def vr(b, n): return f'v[{b}:{b+n-1}]'
LOG2E = math.log2(math.e)
SCL = (128 ** -0.5) * LOG2E
DPPM = 'row_mask:0xf bank_mask:0xf'
SW = 31
SU = 30
L16, VTR, VXS, VXR, VT0 = 0, 1, 2, 3, 4

def wreg(i, nv):
    return ('a', 16 * i) if i < 16 else ('v', 256 - 16 * nv + 16 * (i - 16))

def load_units(a, units, nslots, ringbase_s, tag, toff=32):
    def dma(n):
        srd, sb, imms, vo, _ = units[n]
        for i in range(4):
            a(f's_add_u32 s34, s{sb}, {imms[i]}')
            a(f's_add_u32 m0, s{ringbase_s}, {(n % nslots) * 4096 + i * 1024}')
            a(f'buffer_load_dwordx4 v{vo}, s[{srd}:{srd+3}], s34 offen lds', tok=f'{tag}d{n}')
    for n in range(min(nslots, len(units))): dma(n)
    for n, u in enumerate(units):
        a.wait_tok(f'{tag}d{n}')
        k, b = u[4]
        for t in range(2):
            for rp in range(4):
                a(f'ds_read_b64_tr_b16 {k}[{b+8*t+2*rp}:{b+8*t+2*rp+1}], v{VTR} offset:{(n % nslots)*4096 + rp*1024 + t*toff}', tok=f'{tag}t{n}')
        if n + nslots < len(units):
            a.wait_tok(f'{tag}t{n}')
            dma(n + nslots)

def load_units_coop(a, units, nslots, base, wstride, stride, tag, TR=96, VS=104):
    t = VT0
    a(f'v_lshrrev_b32 v{t}, 8, v{L16}'); a(f'v_bfe_u32 v{t+1}, v{L16}, 4, 4')
    a(f'v_lshlrev_b32 v{t+2}, 1, v{t}'); a(f'v_xor_b32 v{t+2}, v{t+2}, v{t+1}'); a(f'v_xor_b32 v{t+3}, 8, v{t+2}')
    a(f'v_mul_u32_u24 v{t}, {stride}, v{t}')
    a(f'v_lshl_add_u32 v{VS}, v{t+2}, 4, v{t}'); a(f'v_lshl_add_u32 v{VS+1}, v{t+3}, 4, v{t}')
    def dma(n):
        srd, sb, row0, _ = units[n]
        for g in range(4):
            a(f's_add_u32 s34, s{sb}, {(row0 + 8 * g) * stride}')
            a(f's_add_u32 m0, s33, {(n % nslots) * 4096 + g * 1024}')
            a(f'buffer_load_dwordx4 v{VS + (g & 1)}, s[{srd}:{srd+3}], s34 offen lds', tok=f'{tag}d{n}')
    dep = nslots - 1
    for n in range(dep): dma(n)
    a(f'v_lshrrev_b32 v{t}, 6, v{L16}'); a(f'v_and_b32 v{t+1}, 7, v{t}'); a(f'v_lshlrev_b32 v{t+1}, 1, v{t+1}')
    a(f'v_bfe_u32 v{t+2}, v{L16}, 4, 1'); a(f'v_lshlrev_b32 v{t+2}, 3, v{t+2}'); a(f'v_lshl_add_u32 v{t+2}, v{t}, 8, v{t+2}')
    a(f's_lshl_b32 s34, s{SW}, 2'); a(f'v_bfe_u32 v{t+3}, v{L16}, 5, 1'); a(f'v_add_u32 v{t+3}, s34, v{t+3}')
    for tt in range(2):
        a(f'v_add_u32 v{t+4}, {2*tt}, v{t+3}'); a(f'v_xor_b32 v{t+4}, v{t+4}, v{t+1}'); a(f'v_lshl_add_u32 v{t+4}, v{t+4}, 4, v{t+2}')
        for rp in range(4): a(f'v_add_u32 v{TR+4*tt+rp}, {base + rp*wstride}, v{t+4}')
    for n, u in enumerate(units):
        a.wait_tok(f'{tag}d{n}')
        a('s_waitcnt lgkmcnt(0)'); a('s_barrier')
        if n + dep < len(units): dma(n + dep)
        k, b = u[3]
        for tt in range(2):
            for rp in range(4):
                a(f'ds_read_b64_tr_b16 {k}[{b+8*tt+2*rp}:{b+8*tt+2*rp+1}], v{TR+4*tt+rp} offset:{(n % nslots)*4096}')

def worker_setup(a):
    a('v_lshrrev_b32 v16, 6, v0'); a(f'v_readfirstlane_b32 s{SW}, v16')
    a('v_and_b32 v17, 63, v0')
    a(f'v_lshlrev_b32 v{L16}, 4, v17')
    a('v_lshrrev_b32 v18, 4, v17'); a('v_lshlrev_b32 v18, 1, v18'); a('v_mov_b32 v19, 0x78'); a('v_lshrrev_b32 v19, v18, v19'); a('v_xor_b32 v19, v19, v17'); a('v_and_b32 v19, 3, v19')
    a('v_lshrrev_b32 v20, 2, v17'); a(f'v_mul_u32_u24 v{VXS}, 1280, v20'); a(f'v_lshl_add_u32 v{VXS}, v19, 4, v{VXS}')
    a('v_bfe_u32 v18, v17, 2, 2'); a('v_lshlrev_b32 v18, 1, v18'); a('v_mov_b32 v19, 0x78'); a('v_lshrrev_b32 v19, v18, v19'); a('v_lshrrev_b32 v21, 4, v17'); a('v_xor_b32 v19, v19, v21'); a('v_and_b32 v19, 3, v19')
    a('v_and_b32 v20, 15, v17'); a(f'v_lshlrev_b32 v{VXR}, 6, v20'); a(f'v_lshl_add_u32 v{VXR}, v19, 4, v{VXR}')

def set_vtr(a, ring_s, sh=3):
    a(f'v_lshrrev_b32 v{VT0}, 6, v{L16}'); a(f'v_lshlrev_b32 v{VT0}, 6, v{VT0}'); a(f'v_bfe_u32 v{VT0+1}, v{L16}, 4, 2')
    a(f'v_lshl_add_u32 v{VTR}, v{VT0+1}, {sh}, v{VT0}'); a(f'v_add_u32 v{VTR}, s{ring_s}, v{VTR}')

def lane_rows(a, dst, gmul, rfun, stride):
    t = VT0
    a(f'v_lshrrev_b32 v{t}, 8, v{L16}'); a(f'v_mul_u32_u24 v{t}, {gmul}, v{t}')
    a(f'v_bfe_u32 v{t+1}, v{L16}, 6, 2')
    if rfun == 'r': a(f'v_add_u32 v{t}, v{t}, v{t+1}')
    else:
        a(f'v_lshrrev_b32 v{t+2}, 1, v{t+1}'); a(f'v_add_u32 v{t}, v{t}, v{t+2}'); a(f'v_and_b32 v{t+1}, 1, v{t+1}'); a(f'v_lshl_add_u32 v{t}, v{t+1}, 4, v{t}')
    a(f's_mov_b32 s34, {stride}'); a(f'v_mul_lo_u32 v{t}, v{t}, s34'); a(f'v_bfe_u32 v{t+1}, v{L16}, 4, 2'); a(f'v_lshl_add_u32 v{dst}, v{t+1}, 4, v{t}')

XB = 40960
PREF = False
NROUND = -(-64 // NWX)
RT = True
RTOFF = FLG + 0x200000
def rt(a, t=VT0+6):
    if RT == 'dbg':
        a('s_memrealtime s[72:73]'); a('s_waitcnt lgkmcnt(0)')
        a(f'v_mov_b32 v{t}, s75'); a(f'v_mov_b32 v{t+1}, s72'); a('s_add_u32 s75, s75, 4')
        a(f's_cmp_eq_u32 s{SW}, 0'); a('s_cselect_b32 s74, 0, 0x40000000')
        a('s_mov_b64 exec, 1')
        a(f'buffer_atomic_umax v{t+1}, v{t}, s[8:11], s74 offen')
        a('s_mov_b64 exec, -1')
        return
    if not RT: return
    a('s_memrealtime s[72:73]'); a('s_waitcnt lgkmcnt(0)')
    a(f's_lshl_b32 s74, s2, 2'); a(f's_add_u32 s74, s74, s{SW}'); a('s_lshl_b32 s74, s74, 7'); a(f's_add_u32 s74, s74, {RTOFF}')
    a('s_add_u32 s74, s74, s75'); a('s_add_u32 s75, s75, 4')
    a(f'v_mov_b32 v{t}, 0'); a(f'v_mov_b32 v{t+1}, s72')
    a(f'buffer_store_dword v{t+1}, v{t}, s[12:15], s74 offen')
def gen_gemm1(a, kind, P):
    stride = 3456 if kind == 'h' else 8192
    ostride = {'kq': 262144, 'v': 262144, 'h': 131072}[kind]
    WO = 12
    XA = 13
    ACC = 16
    XF = 48
    OUT = 80
    a(f's_mul_i32 s33, s{SW}, {7*4096}'); a(f's_add_u32 s33, s33, {XB}')
    a(f's_lshr_b32 s34, s{SW}, 1'); a('s_lshl_b32 s34, s34, 5'); a(f's_and_b32 s35, s{SW}, 1'); a('s_lshl_b32 s35, s35, 2'); a('s_add_u32 s34, s34, s35'); a(f's_mul_i32 s34, s34, {stride}')
    a('s_add_u32 s76, s44, s34'); a('s_add_u32 s77, s45, s34')
    a(f's_mul_i32 s50, s{SW}, 10240')
    a(f's_mul_i32 s51, s{SW}, 320')
    def xdma(n, buf_s, tile_s, tok):
        return [f's_add_u32 s34, s{tile_s}, {(n >> 1) * 64 + (n & 1) * 20480}', f's_add_u32 m0, s{buf_s}, {n * 1024}',
                (f'buffer_load_dwordx4 v{VXS}, s[16:19], s34 offen lds', tok)]
    def emit(p):
        if isinstance(p, tuple): a(p[0], tok=p[1])
        else: a(p)
    a(f's_mul_i32 s52, s46, 40960'); a('s_add_u32 s52, s52, s51'); a('s_mul_i32 s54, s47, 40960'); a('s_mov_b32 s53, s50')
    a('s_barrier')
    for n in range(10):
        for p in xdma(n, 53, 52, f'{P}x'): emit(p)
    units = [(36 + 4 * pr, 76 + pr, 64 * j, wreg(2 * j + pr, 4)) for j in range(10) for pr in range(2)]
    load_units_coop(a, units, 7, XB, 7 * 4096, stride, P + 'w')
    a('s_waitcnt vmcnt(0) lgkmcnt(0)'); a('s_barrier')
    rt(a)
    a('s_add_u32 s52, s52, s54'); a(f's_add_u32 s53, s50, {XB}')
    for n in range(10):
        for p in xdma(n, 53, 52, f'{P}x1'): emit(p)
    a('s_add_u32 s52, s52, s54'); a(f's_add_u32 s53, s50, {2*XB}')
    a(f's_mov_b32 s55, 0')
    a(f's_mul_i32 s56, s46, {ostride}'); a('s_add_u32 s56, s56, s48'); a(f's_mul_i32 s57, s47, {ostride}')
    a.label(f'{P}_tile')
    a(f'v_add_u32 v{XA}, s55, v{VXR}')
    side = []
    for n in range(10): side += [xdma(n, 53, 52, f'{P}xn')]
    def rdx(ks):
        for mt in range(2): a(f'ds_read_b128 {vr(XF + 8*(ks % 4) + 4*mt, 4)}, v{XA} offset:{(2*ks+mt)*1024}')
    rdx(0); rdx(1); rdx(2)
    for ks in range(20):
        j, kh = ks >> 1, ks & 1
        n = 0
        for pr in range(2):
            k, b = wreg(2 * j + pr, 4)
            for t in range(2):
                Wf = f'{k}[{b+8*t+4*kh}:{b+8*t+4*kh+3}]'
                for mt in range(2):
                    c = vr(ACC + 16 * mt + 8 * pr + 4 * t, 4); Xf = vr(XF + 8 * (ks % 4) + 4 * mt, 4)
                    A_, B_ = (Xf, Wf) if kind == 'v' else (Wf, Xf)
                    a(f'v_mfma_f32_16x16x32_bf16 {c}, {A_}, {B_}, {"0" if ks == 0 else c}')
                    n += 1
                    if n == 1 and ks + 3 < 20: rdx(ks + 3)
                    if n == 4 and side and ks >= 1:
                        for p in side.pop(0): emit(p)
    if kind == 'kq':
        for mt in range(2):
            for pr in range(2):
                o = OUT + 8 * mt + 4 * pr; b = ACC + 16 * mt + 8 * pr
                for r in range(4): a(f'v_cvt_pk_bf16_f32 v{o+r}, v{b+r}, v{b+4+r}')
                a(f's_add_u32 s35, s56, {pr*8192 + mt*4096}')
                a(f'buffer_store_dwordx4 {vr(o,4)}, v{L16}, s[12:15], s35 offen sc1')
    elif kind == 'v':
        for T in range(4):
            o = OUT + 4 * T
            for mt in range(2):
                b = ACC + 16 * mt + 4 * T
                a(f'v_cvt_pk_bf16_f32 v{o+2*mt}, v{b}, v{b+1}'); a(f'v_cvt_pk_bf16_f32 v{o+2*mt+1}, v{b+2}, v{b+3}')
            if T == 2: a('s_add_u32 s35, s56, 8192')
            a(f'buffer_store_dwordx4 {vr(o,4)}, v{L16}, s[12:15], s{35 if T >= 2 else 56} offen offset:{(T&1)*1024} sc1')
    else:
        a(f's_mov_b32 s35, {f2u(-LOG2E):#x}')
        for mt in range(2):
            G = ACC + 16 * mt; U = G + 8; E = OUT + 8
            for r in range(8): a(f'v_mul_f32 v{E+r}, s35, v{G+r}')
            for r in range(8): a(f'v_exp_f32 v{E+r}, v{E+r}')
            for r in range(8): a(f'v_mul_f32 v{G+r}, v{G+r}, v{U+r}')
            for r in range(8): a(f'v_add_f32 v{E+r}, 1.0, v{E+r}')
            for r in range(8): a(f'v_rcp_f32 v{E+r}, v{E+r}')
            for r in range(8): a(f'v_mul_f32 v{G+r}, v{G+r}, v{E+r}')
            o = OUT + 4 * mt
            for r in range(4): a(f'v_cvt_pk_bf16_f32 v{o+r}, v{G+r}, v{G+4+r}')
            if mt == 1: a('s_add_u32 s58, s56, 65536')
            a(f'buffer_store_dwordx4 {vr(o,4)}, v{L16}, s[12:15], s{58 if mt else 56} offen sc1')
    nst = 2 if kind == 'h' else 4
    a('s_add_u32 s46, s46, s47'); a('s_add_u32 s52, s52, s54'); a('s_add_u32 s56, s56, s57')
    a(f's_add_u32 s53, s55, s50')
    a(f's_add_u32 s55, s55, {XB}'); a(f's_cmp_eq_u32 s55, {3*XB}'); a('s_cselect_b32 s55, 0, s55')
    a(f's_waitcnt vmcnt({10 + nst})')
    if kind != 'h':
        a('s_cmp_lg_u32 s59, 0'); a(f's_cbranch_scc1 {P}_nw'); a('s_waitcnt vmcnt(0)'); a.label(f'{P}_nw')
    a('s_barrier')
    if kind != 'h':
        a('s_add_u32 s59, s59, 1')
        a(f's_cmp_lg_u32 s{SW}, 0'); a(f's_cbranch_scc1 {P}_nosig')
        a('s_cmp_eq_u32 s59, 1'); a(f's_cselect_b32 s35, {D_KVR}, 0')
        a(f's_cmp_eq_u32 s59, {KVROUNDS[1]+1}'); a(f's_cselect_b32 s35, {D_KVR+4}, s35')
        a('s_cmp_eq_u32 s35, 0'); a(f's_cbranch_scc1 {P}_nosig')
        a(f'v_mov_b32 v{VT0}, s35'); a(f'v_mov_b32 v{VT0+1}, 1')
        a('s_mov_b64 exec, 1')
        a(f'buffer_atomic_add v{VT0+1}, v{VT0}, s[8:11], 0 offen')
        a('s_mov_b64 exec, -1')
        a.label(f'{P}_nosig')
    a('s_cmp_lt_u32 s46, 64'); a(f's_cbranch_scc1 {P}_tile')
    a('s_waitcnt vmcnt(0)')

def signal(a, off):
    lab = a.newlabel('LSG')
    a('s_barrier')
    a(f's_cmp_lg_u32 s{SW}, 0'); a(f's_cbranch_scc1 {lab}')
    a(f'v_mov_b32 v{VT0}, {off}'); a(f'v_mov_b32 v{VT0+1}, 1')
    a('s_mov_b64 exec, 1')
    a(f'buffer_atomic_add v{VT0+1}, v{VT0}, s[8:11], 0 offen')
    a('s_mov_b64 exec, -1')
    a.label(lab)

def wait_dbg(a, off, target, lab, fail, t=VT0):
    a(f's_cmp_lg_u32 s{SW}, 0'); a(f's_cbranch_scc1 {lab}_ok')
    a(f'v_mov_b32 v{t}, {off}'); a('s_mov_b32 s34, 0')
    a.label(lab)
    a(f'buffer_load_dword v{t+1}, v{t}, s[8:11], 0 offen sc1')
    a('s_add_u32 s34, s34, 1'); a('s_cmp_gt_u32 s34, 2000000'); a(f's_cbranch_scc1 {fail}')
    a(f'v_readfirstlane_b32 s35, v{t+1}'); a(f's_cmp_ge_u32 s35, {target}'); a(f's_cbranch_scc1 {lab}_ok')
    a('s_sleep 16'); a(f's_branch {lab}')
    a.label(lab + '_ok')
    a('s_barrier')

def kv_wait(a, need_s, ready_s, lab, fail, t, l16):
    a(f'v_lshrrev_b32 v{t}, 2, v{l16}'); a(f'v_min_u32 v{t}, 12, v{t}'); a('s_mov_b32 s34, 0')
    a.label(lab)
    a(f'buffer_load_dword v{t+1}, v{t}, s[8:11], 0 offen offset:{D_KVR} sc1')
    a('s_add_u32 s34, s34, 1'); a('s_cmp_gt_u32 s34, 2000000'); a(f's_cbranch_scc1 {fail}')
    a(f'v_cmp_gt_u32 vcc, {NWG}, v{t+1}')
    a('s_ff1_i32_b64 s35, vcc'); a('s_lshl_b32 s35, s35, 3'); a(f's_lshr_b32 s{ready_s}, {(64 << 24) | (KVROUNDS[1]*NWX << 16) | (KVROUNDS[0]*NWX << 8):#x}, s35'); a(f's_and_b32 s{ready_s}, s{ready_s}, 255')
    a(f's_cmp_gt_u32 s{ready_s}, s{need_s}'); a(f's_cbranch_scc1 {lab}_ok')
    a('s_sleep 8'); a(f's_branch {lab}')
    a.label(lab + '_ok')

def gen_gate(a, nwaves):
    GW, XF, D = 16, 96, 176
    a(f'v_lshrrev_b32 v{VT0}, 8, v{L16}'); a(f'v_lshlrev_b32 v{VT0}, 4, v{VT0}')
    for ks in range(20): a(f'buffer_load_dwordx4 {vr(GW+4*ks,4)}, v{VT0}, s[36:39], 0 offen offset:{64*ks}')
    a(f'v_bfe_u32 v{VT0+1}, v{L16}, 4, 4'); a(f'v_mul_u32_u24 v{VT0+2}, 1280, v{VT0+1}'); a(f'v_add_u32 v{VT0+2}, v{VT0+2}, v{VT0}')
    a(f'v_lshlrev_b32 v{VT0+3}, 2, v{VT0+1}')
    a(f's_mov_b32 s35, {f2u(-LOG2E):#x}')
    a.label('LG_loop')
    a('s_mul_i32 s50, s46, 20480'); a('s_lshl_b32 s51, s46, 6'); a(f's_add_u32 s51, s51, {GG}')
    for ks in range(20): a(f'buffer_load_dwordx4 {vr(XF+4*ks,4)}, v{VT0+2}, s[16:19], s50 offen offset:{64*ks}')
    for ks in range(20): a(f'v_mfma_f32_16x16x32_bf16 {vr(D,4)}, {vr(GW+4*ks,4)}, {vr(XF+4*ks,4)}, {"0" if ks == 0 else vr(D,4)}')
    a(f'v_mul_f32 v{D}, s35, v{D}'); a(f'v_exp_f32 v{D}, v{D}'); a(f'v_add_f32 v{D}, 1.0, v{D}'); a(f'v_rcp_f32 v{D}, v{D}')
    a('s_mov_b64 exec, 0xffff')
    a(f'buffer_store_dword v{D}, v{VT0+3}, s[12:15], s51 offen sc1')
    a('s_mov_b64 exec, -1')
    a(f's_add_u32 s46, s46, {nwaves}'); a('s_cmp_lt_u32 s46, 128'); a('s_cbranch_scc1 LG_loop')
    a('s_waitcnt vmcnt(0)')

def gen_phase1(a):
    a('s_load_dwordx2 s[20:21], s[0:1], 0')
    a('s_load_dwordx4 s[24:27], s[0:1], 24')
    a('s_load_dwordx2 s[22:23], s[0:1], 16')
    a('s_load_dwordx4 s[60:63], s[0:1], 64')
    a('s_load_dwordx2 s[64:65], s[0:1], 88')
    a('s_load_dwordx2 s[28:29], s[0:1], 40')
    worker_setup(a)
    a('s_mov_b32 s75, 16' if RT == 'dbg' else 's_mov_b32 s75, 0'); rt(a)
    a(f'v_mov_b32 v{VT0}, 0'); a(f'v_lshrrev_b32 v{VT0+1}, 2, v{L16}')
    a(f's_lshl_b32 s34, s{SU}, 7'); a(f's_add_u32 s34, s34, {FLG}')
    a('s_mov_b64 exec, 0xffffffff')
    a(f'buffer_store_dword v{VT0}, v{VT0+1}, s[12:15], s34 offen sc1')
    a('s_mov_b64 exec, -1')
    a('s_waitcnt lgkmcnt(0)')
    a.srd(16, 20, 2621440)
    if PREF:
        per = 5242880 // (NWG * 4)
        a.srd(36, 22, 5242880); a.srd(40, 28, 5242880)
        a(f's_lshl_b32 s34, s{SU}, 2'); a(f's_add_u32 s34, s34, s{SW}'); a(f's_mul_i32 s34, s34, {per}'); a('s_and_b32 s34, s34, 0xffffff80'); a('s_add_u32 s35, s34, 4096')
        for srd in (36, 40):
            for i in range(7): a(f'buffer_load_dwordx4 v[{96+4*i}:{99+4*i}], v{L16}, s[{srd}:{srd+3}], s{34 if i < 4 else 35} offen offset:{(i%4)*1024} nt')
    a(f's_mul_i32 s66, s{SU}, {65536 // NWX + 1}'); a('s_lshr_b32 s66, s66, 16'); a(f's_mul_i32 s34, s66, {NWX}'); a(f's_sub_u32 s67, s{SU}, s34')
    a('s_mov_b32 s46, s67'); a(f's_mov_b32 s47, {NWX}')
    a('s_and_b32 s68, s66, 15'); a('s_lshl_b32 s44, s68, 9'); a('s_add_u32 s45, s44, 256')
    a('s_lshl_b32 s69, s68, 14')
    a(f's_mov_b32 s70, s{SW}'); a('s_mov_b32 s59, 0')
    a('s_cmp_ge_u32 s66, 16'); a('s_cbranch_scc1 LW_v')
    a.srd(36, 24, 5242880); a.srd(40, 24, 5242880)
    a('s_lshl_b32 s48, s70, 10'); a('s_add_u32 s48, s48, s69'); a(f's_add_u32 s48, s48, {KXG}')
    a('s_mov_b32 s71, 0')
    a.label('LW_kq')
    gen_gemm1(a, 'kq', 'LK')
    a('s_cmp_eq_u32 s71, 1'); a('s_cbranch_scc1 LW_p1b_done')
    a('s_branch LW_p1a_done')
    a.label('LW_v')
    a.srd(36, 26, 5242880); a.srd(40, 26, 5242880)
    a('s_lshl_b32 s48, s70, 11'); a('s_add_u32 s48, s48, s69'); a(f's_add_u32 s48, s48, {VXG}')
    gen_gemm1(a, 'v', 'LV')
    a.label('LW_p1a_done')
    signal(a, D_KVR + 8)
    rt(a)
    a('s_mov_b32 s46, s67'); a(f's_mov_b32 s47, {NWX}')
    a('s_cmp_ge_u32 s66, 16'); a('s_cbranch_scc1 LW_h')
    a.srd(36, 22, 5242880); a.srd(40, 22, 5242880)
    a('s_lshl_b32 s48, s70, 10'); a('s_add_u32 s48, s48, s69'); a(f's_add_u32 s48, s48, {QXG}')
    a('s_mov_b32 s71, 1')
    a('s_branch LW_kq')
    a.label('LW_h')
    a('s_cmp_ge_u32 s66, 30'); a('s_cbranch_scc1 LW_gate')
    a.srd(36, 60, 2211840); a.srd(40, 62, 2211840)
    a('s_lshl_b32 s34, s68, 2'); a(f's_add_u32 s34, s34, s{SW}')
    a('s_lshl_b32 s44, s68, 8'); a('s_mov_b32 s45, s44')
    a('s_lshl_b32 s48, s34, 10'); a(f's_add_u32 s48, s48, {HG}')
    gen_gemm1(a, 'h', 'LH')
    a('s_branch LW_p1b_done')
    a.label('LW_gate')
    a.srd(36, 64, 1280)
    a(f's_sub_u32 s46, s{SU}, {30*NWX}'); a('s_lshl_b32 s46, s46, 2'); a(f's_add_u32 s46, s46, s{SW}')
    gen_gate(a, 8 * NWX)
    a.label('LW_p1b_done')
    signal(a, D_P1B)
    rt(a)


def lastrt(a, slot):
    if RT is not True: return
    a('s_mov_b32 s76, s75' if False else f's_mov_b32 s71, s75'); a(f's_mov_b32 s75, {4*slot}'); rt(a); a('s_mov_b32 s75, s71')

def poll_ws(a, t, soff, cond_fn, lab, fail, width=1, sleep=4):
    a(f'v_and_b32 v{t}, {0 if width == 1 else 16}, v{L16}'); a('s_mov_b32 s34, 0')
    a.label(lab)
    if width == 1: a(f'buffer_load_dword v{t+2}, v{t}, s[12:15], s{soff} offen sc1')
    else: a(f'buffer_load_dwordx4 {vr(t+2,4)}, v{t}, s[12:15], s{soff} offen sc1')
    a('s_add_u32 s34, s34, 1'); a('s_cmp_gt_u32 s34, 4000000'); a(f's_cbranch_scc1 {fail}')
    cond_fn()
    a(f's_cbranch_scc1 {lab}_ok')
    a(f's_sleep {sleep}'); a(f's_branch {lab}')
    a.label(lab + '_ok')

def gen_attn(a, fail):
    QF, KF, VF, KM, VM, SS, O, T = 16, 48, 80, 112, 128, 136, 160, 224
    SAA, SAB, SBB, SMA, SMB = SS, SS + 4, SS + 8, SS + 12, SS + 16
    a(f's_mov_b32 s54, {f2u(SCL):#x}')
    a(f'v_bfe_u32 v{T}, v{L16}, 4, 4'); a(f'v_lshrrev_b32 v{T+1}, 8, v{L16}'); a(f'v_lshlrev_b32 v{T+1}, 2, v{T+1}')
    for r in range(4):
        a(f'v_add_u32 v{T+2}, {r}, v{T+1}'); a(f'v_cmp_le_u32 s[{76+2*r}:{77+2*r}], v{T+2}, v{T}')
    a(f'v_mov_b32 v{VT0+8}, 0xff800000'); a(f'v_lshrrev_b32 v{VT0+9}, 1, v{L16}')
    NEG, L8 = VT0 + 8, VT0 + 9
    a('s_lshl_b32 s48, s47, 13'); a('s_lshl_b32 s49, s47, 7'); a(f's_add_u32 s49, s49, {FLG}'); a('s_lshl_b32 s50, s47, 12')
    a.label('LA_loop')
    a('s_lshl_b32 s51, s46, 18'); a('s_add_u32 s52, s51, s48')
    for nm, base, off in (('q', QF, QXG), ('k', KF, KXG), ('v', VF, VXG)):
        a(f's_add_u32 s53, s52, {off}'); a(f's_add_u32 s55, s53, 4096')
        for i in range(8): a(f'buffer_load_dwordx4 {vr(base+4*i,4)}, v{L16}, s[12:15], s{53 if i < 4 else 55} offen offset:{(i&3)*1024} sc1')
    for (d, kt, qt) in ((SAA, 0, 0), (SAB, 0, 1), (SBB, 1, 1)):
        for f in range(4): a(f'v_mfma_f32_16x16x32_bf16 {vr(d,4)}, {vr(KF+16*kt+4*f,4)}, {vr(QF+16*qt+4*f,4)}, {"0" if f == 0 else vr(d,4)}')
    for d in (SAA, SBB):
        for r in range(4): a(f'v_cndmask_b32 v{d+r}, v{NEG}, v{d+r}, s[{76+2*r}:{77+2*r}]')
    MA, MB, M2 = T, T + 1, T + 2
    a(f'v_max3_f32 v{MA}, v{SAA}, v{SAA+1}, v{SAA+2}'); a(f'v_max_f32 v{MA}, v{MA}, v{SAA+3}')
    a(f'v_max3_f32 v{MB}, v{SAB}, v{SAB+1}, v{SAB+2}'); a(f'v_max3_f32 v{MB}, v{MB}, v{SAB+3}, v{SBB}'); a(f'v_max3_f32 v{MB}, v{MB}, v{SBB+1}, v{SBB+2}'); a(f'v_max_f32 v{MB}, v{MB}, v{SBB+3}')
    def cond():
        a(f'v_min3_u32 v{VT0+2}, v{VT0+2}, v{VT0+3}, v{VT0+4}'); a(f'v_min_u32 v{VT0+2}, v{VT0+2}, v{VT0+5}')
        a(f'v_readlane_b32 s35, v{VT0+2}, 0'); a(f'v_readlane_b32 s56, v{VT0+2}, 1'); a('s_min_u32 s35, s35, s56'); a('s_cmp_gt_u32 s35, s46')
    poll_ws(a, VT0, 49, cond, 'LA_p', fail, width=4)
    lastrt(a, 9)
    a(f's_add_u32 s53, s52, {KVM}'); a('s_add_u32 s55, s53, 4096')
    for f in range(4): a(f'buffer_load_dwordx4 {vr(KM+4*f,4)}, v{L16}, s[12:15], s53 offen offset:{f*1024} sc1')
    for w in range(4): a(f'buffer_load_dwordx2 {vr(VM+2*w,2)}, v{L8}, s[12:15], s55 offen offset:{w*512} sc1')
    for f in range(4):
        for (d, qt) in ((SMA, 0), (SMB, 1)):
            a(f'v_mfma_f32_16x16x32_bf16 {vr(d,4)}, {vr(KM+4*f,4)}, {vr(QF+16*qt+4*f,4)}, {"0" if f == 0 else vr(d,4)}')
    a(f'v_max3_f32 v{MA}, v{MA}, v{SMA}, v{SMA+1}'); a(f'v_max3_f32 v{MB}, v{MB}, v{SMB}, v{SMB+1}')
    def xred(op, regs):
        for sw in ('v_permlane16_swap_b32', 'v_permlane32_swap_b32'):
            for i, m in enumerate(regs): a(f'v_mov_b32 v{M2+i}, v{m}')
            for i, m in enumerate(regs): a(f'{sw} v{m}, v{M2+i}')
            for i, m in enumerate(regs): a(f'{op} v{m}, v{m}, v{M2+i}')
    xred('v_max_f32', [MA, MB])
    a(f'v_mul_f32 v{MA}, s54, v{MA}'); a(f'v_mul_f32 v{MB}, s54, v{MB}')
    va = [SAA + r for r in range(4)] + [SMA, SMA + 1]
    vb = [SAB + r for r in range(8)] + [SMB, SMB + 1]
    for x in va: a(f'v_fma_f32 v{x}, v{x}, s54, -v{MA}')
    for x in vb: a(f'v_fma_f32 v{x}, v{x}, s54, -v{MB}')
    for x in va + vb: a(f'v_exp_f32 v{x}, v{x}')
    BA, BB, PA, PB = T + 8, T + 12, T + 16, T + 20
    a(f'v_cvt_pk_bf16_f32 v{BA}, v{SAA}, v{SAA+1}'); a(f'v_cvt_pk_bf16_f32 v{BA+1}, v{SAA+2}, v{SAA+3}'); a(f'v_mov_b32 v{BA+2}, 0'); a(f'v_mov_b32 v{BA+3}, 0')
    for i in range(4): a(f'v_cvt_pk_bf16_f32 v{BB+i}, v{SAB+2*i}, v{SAB+2*i+1}')
    for (p, sm) in ((PA, SMA), (PB, SMB)):
        a(f'v_cvt_pk_bf16_f32 v{p}, v{sm}, v{sm+1}'); a(f'v_mov_b32 v{p+1}, 0'); a(f'v_mov_b32 v{p+2}, 0'); a(f'v_cvt_pk_bf16_f32 v{p+3}, v{sm}, v{sm+1}')
    sums = []
    for (m, vals) in ((MA, va), (MB, vb)):
        sums.append(f'v_add_f32 v{m}, v{vals[0]}, v{vals[1]}')
        for x in vals[2:]: sums.append(f'v_add_f32 v{m}, v{m}, v{x}')
    for Tt in range(8):
        for mt, bt in ((0, BA), (1, BB)):
            a(f'v_mfma_f32_16x16x32_bf16 {vr(O+32*mt+4*Tt,4)}, {vr(VF+4*Tt,4)}, {vr(bt,4)}, 0')
            if sums: a(sums.pop(0))
    xred('v_add_f32', [MA, MB])
    a(f'v_rcp_f32 v{MA}, v{MA}'); a(f'v_rcp_f32 v{MB}, v{MB}')
    for mt, pm in ((0, PA), (1, PB)):
        for Tt in range(8):
            d = vr(O + 32 * mt + 4 * Tt, 4)
            a(f'v_mfma_f32_16x16x16_bf16 {d}, {vr(VM+2*(Tt>>1),2)}, {vr(pm+2*(Tt&1),2)}, {d}')
    a('s_add_u32 s53, s51, s50'); a(f's_add_u32 s53, s53, {OG}'); a('s_add_u32 s55, s53, 131072')
    for mt, m in ((0, MA), (1, MB)):
        for f in range(4):
            b = O + 32 * mt + 8 * f
            for r in range(8): a(f'v_mul_f32 v{b+r}, v{b+r}, v{m}')
            for r in range(4): a(f'v_cvt_pk_bf16_f32 v{b+r}, v{b+r}, v{b+4+r}')
            a(f'buffer_store_dwordx4 {vr(b,4)}, v{L16}, s[12:15], s{55 if mt else 53} offen offset:{f*1024} sc1')
    a('s_lshl_b32 s53, s46, 7'); a(f's_add_u32 s53, s53, {FLG + 32*128}')
    a(f'v_mov_b32 v{VT0}, 0'); a(f'v_mov_b32 v{VT0+1}, 1')
    a(f's_cmp_eq_u32 s{SW}, 0'); a('s_cselect_b32 s53, s53, 0x40000000')
    lastrt(a, 10)
    a('s_waitcnt vmcnt(0)'); a('s_barrier')
    a('s_mov_b64 exec, 1')
    a(f'buffer_atomic_add v{VT0+1}, v{VT0}, s[12:15], s53 offen')
    a('s_mov_b64 exec, -1')
    a(f's_add_u32 s46, s46, {NWX}'); a('s_cmp_lt_u32 s46, 64'); a('s_cbranch_scc1 LA_loop')

def gen_proj_load(a):
    a('s_load_dwordx2 s[20:21], s[0:1], 40'); a('s_load_dwordx2 s[22:23], s[0:1], 80'); a('s_load_dwordx2 s[24:25], s[0:1], 96')
    a(f's_mul_i32 s33, s{SW}, {9*4096}')
    set_vtr(a, 33, 4)
    lane_rows(a, 12, 4, 'r16', 1280)
    a('s_waitcnt lgkmcnt(0)')
    a.srd(36, 20, 5242880); a.srd(40, 22, 2211840); a.srd(16, 24, 2621440)
    a(f's_lshl_b32 s34, s47, 6'); a(f's_mul_i32 s44, s{SW}, {1024*1280}'); a('s_add_u32 s44, s44, s34')
    a(f's_mul_i32 s45, s{SW}, {448*1280}'); a('s_add_u32 s45, s45, s34')
    a('s_barrier')
    units = []
    for n in range(23):
        j = n if n < 7 else n - 7
        loc = wreg(16 + n, 7) if n < 7 else wreg(n - 7, 7)
        units.append((40 if n < 7 else 36, 45 if n < 7 else 44, [(64 * j + 32 * (i >> 1) + 2 * (i & 1)) * 1280 for i in range(4)], 12, loc))
    load_units(a, units, 9, 33, 'pw', toff=8)
    a('s_waitcnt vmcnt(0) lgkmcnt(0)'); a('s_barrier')

def gen_proj(a, fail):
    AA, AB, RING, NR = 16, 24, 32, 28
    GV, VO, VLW = 12, 14, 15
    a(f'v_bfe_u32 v{VT0+6}, v{L16}, 4, 4'); a(f'v_mul_u32_u24 v{VO}, 1280, v{VT0+6}'); a(f'v_lshrrev_b32 v{VT0+7}, 8, v{L16}'); a(f'v_lshl_add_u32 v{VO}, v{VT0+7}, 4, v{VO}')
    a(f'v_lshlrev_b32 v{VXS}, 2, v{VT0+6}')
    a(f's_lshl_b32 s34, s{SW}, 11'); a(f'v_add_u32 v{VLW}, s34, v{L16}')
    a(f's_mul_i32 s48, s{SW}, {14*1024}'); a('s_lshl_b32 s34, s58, 16'); a('s_add_u32 s48, s48, s34'); a(f's_add_u32 s48, s48, {HG}')
    a(f's_lshl_b32 s49, s{SW}, 15'); a('s_lshl_b32 s34, s58, 17'); a('s_add_u32 s49, s49, s34'); a(f's_add_u32 s49, s49, {OG}')
    a('s_mul_i32 s50, s58, 20480'); a('s_lshl_b32 s34, s47, 6'); a('s_add_u32 s50, s50, s34')
    a(f's_lshl_b32 s60, s58, 6'); a(f's_add_u32 s60, s60, {GG}')
    def gemm(nks, base_s, acc, wloc):
        def ld(ks):
            if (ks & 3) == 0: a(f's_add_u32 s56, s{base_s}, {ks*1024}')
            a(f'buffer_load_dwordx4 {vr(RING+4*(ks % NR),4)}, v{L16}, s[12:15], s56 offen offset:{(ks&3)*1024} sc1')
        for n in range(min(NR, nks)): ld(n)
        for ks in range(nks):
            k, b = wloc(ks >> 1)
            for t in range(2):
                c = vr(acc + 4 * t, 4)
                a(f'v_mfma_f32_16x16x32_bf16 {c}, {k}[{b+8*t+4*(ks&1)}:{b+8*t+4*(ks&1)+3}], {vr(RING+4*(ks % NR),4)}, {"0" if ks == 0 else c}')
            if ks + NR < nks: ld(ks + NR)
    a.label('LP_loop')
    a('s_lshl_b32 s51, s46, 17'); a('s_add_u32 s51, s51, s48')
    a('s_lshl_b32 s52, s46, 18'); a('s_add_u32 s52, s52, s49')
    a('s_lshl_b32 s53, s46, 7'); a('s_add_u32 s54, s53, s60'); a(f's_add_u32 s53, s53, {FLG + 32*128}')
    a(f'buffer_load_dword v{GV}, v{VXS}, s[12:15], s54 offen sc1')
    gemm(14, 51, AB, lambda j: wreg(16 + j, 7))
    a(f'v_sub_f32 v{VT0+6}, 1.0, v{GV}')
    for r in range(8): a(f'v_mul_f32 v{AB+r}, v{AB+r}, v{VT0+6}')
    def cond():
        a(f'v_readfirstlane_b32 s35, v{VT0+2}'); a('s_cmp_ge_u32 s35, 8')
    a(f's_cmp_lg_u32 s{SW}, 0'); a('s_cbranch_scc1 LP_p_ok')
    poll_ws(a, VT0, 53, cond, 'LP_p', fail, sleep=2)
    a('s_barrier')
    lastrt(a, 9)
    gemm(32, 52, AA, lambda j: wreg(j, 7))
    for r in range(8): a(f'v_fma_f32 v{AB+r}, v{AA+r}, v{GV}, v{AB+r}')
    lastrt(a, 10)
    for q in range(2): a(f'ds_write_b128 v{VLW}, {vr(AB+4*q,4)} offset:{q*1024}')
    a('s_waitcnt lgkmcnt(0)'); a('s_barrier')
    a(f's_cmp_ge_u32 s{SW}, 1'); a('s_cbranch_scc1 LP_skip')
    for w in range(4):
        for t in range(2): a(f'ds_read_b128 {vr(RING+8*w+4*t,4)}, v{L16} offset:{w*2048 + t*1024}')
    for r in range(8):
        a(f'v_add_f32 v{RING+r}, v{RING+r}, v{RING+8+r}'); a(f'v_add_f32 v{RING+16+r}, v{RING+16+r}, v{RING+24+r}')
    for r in range(8): a(f'v_add_f32 v{RING+r}, v{RING+r}, v{RING+16+r}')
    for i in range(4): a(f'v_cvt_pk_bf16_f32 v{RING+32+i}, v{RING+2*i}, v{RING+2*i+1}')
    a('s_mul_i32 s34, s46, 40960'); a('s_add_u32 s34, s34, s50')
    a(f'buffer_store_dwordx4 {vr(RING+32,4)}, v{VO}, s[16:19], s34 offen')
    a.label('LP_skip')
    a('s_barrier')
    a(f's_add_u32 s46, s46, {NWX//2}'); a('s_cmp_lt_u32 s46, 64'); a('s_cbranch_scc1 LP_loop')

DELAY = 0
def gen_worker(a, endlab):
    if DELAY:
        a(f's_mov_b32 s34, {DELAY}'); a.label('LW_dl'); a('s_sleep 32'); a('s_sub_u32 s34, s34, 1'); a('s_cmp_lg_u32 s34, 0'); a('s_cbranch_scc1 LW_dl')
    gen_phase1(a)
    a(f's_lshr_b32 s46, s{SU}, 5'); a(f's_and_b32 s47, s{SU}, 31')
    a('s_cmp_ge_u32 s47, 28'); a(f's_cbranch_scc1 {endlab}')
    a('s_cmp_ge_u32 s47, 20'); a('s_cbranch_scc1 LW_attn')
    gen_proj_load(a)
    rt(a)
    wait_dbg(a, D_P1B, NWG, 'LW_w1', endlab)
    rt(a)
    a('s_and_b32 s58, s46, 1'); a('s_lshr_b32 s46, s46, 1')
    gen_proj(a, endlab)
    rt(a)
    a(f's_branch {endlab}')
    a.label('LW_attn')
    a('s_sub_u32 s47, s47, 20'); a('s_lshl_b32 s47, s47, 2'); a(f's_add_u32 s47, s47, s{SW}')
    wait_dbg(a, D_P1B, NWG, 'LW_w2', endlab)
    rt(a)
    gen_attn(a, endlab)
    rt(a)
```

```python
from al import *
from layout import *
import math, struct
def f2u(x): return struct.unpack('<I', struct.pack('<f', x))[0]
def vr(b, n): return f'v[{b}:{b+n-1}]'
LOG2E = math.log2(math.e)
SCL = (128 ** -0.5) * LOG2E
DPPM = 'row_mask:0xf bank_mask:0xf'
SW = 31
SU = 30
L16, VTR, VXS, VXR, VT0 = 0, 1, 2, 3, 4

def wreg(i, nv):
    return ('a', 16 * i) if i < 16 else ('v', 256 - 16 * nv + 16 * (i - 16))

def load_units(a, units, nslots, ringbase_s, tag, toff=32):
    def dma(n):
        srd, sb, imms, vo, _ = units[n]
        for i in range(4):
            a(f's_add_u32 s34, s{sb}, {imms[i]}')
            a(f's_add_u32 m0, s{ringbase_s}, {(n % nslots) * 4096 + i * 1024}')
            a(f'buffer_load_dwordx4 v{vo}, s[{srd}:{srd+3}], s34 offen lds', tok=f'{tag}d{n}')
    for n in range(min(nslots, len(units))): dma(n)
    for n, u in enumerate(units):
        a.wait_tok(f'{tag}d{n}')
        k, b = u[4]
        for t in range(2):
            for rp in range(4):
                a(f'ds_read_b64_tr_b16 {k}[{b+8*t+2*rp}:{b+8*t+2*rp+1}], v{VTR} offset:{(n % nslots)*4096 + rp*1024 + t*toff}', tok=f'{tag}t{n}')
        if n + nslots < len(units):
            a.wait_tok(f'{tag}t{n}')
            dma(n + nslots)

def load_units_coop(a, units, nslots, base, wstride, stride, tag, TR=96, VS=104):
    t = VT0
    a(f'v_lshrrev_b32 v{t}, 8, v{L16}'); a(f'v_bfe_u32 v{t+1}, v{L16}, 4, 4')
    a(f'v_lshlrev_b32 v{t+2}, 1, v{t}'); a(f'v_xor_b32 v{t+2}, v{t+2}, v{t+1}'); a(f'v_xor_b32 v{t+3}, 8, v{t+2}')
    a(f'v_mul_u32_u24 v{t}, {stride}, v{t}')
    a(f'v_lshl_add_u32 v{VS}, v{t+2}, 4, v{t}'); a(f'v_lshl_add_u32 v{VS+1}, v{t+3}, 4, v{t}')
    def dma(n):
        srd, sb, row0, _ = units[n]
        for g in range(4):
            a(f's_add_u32 s34, s{sb}, {(row0 + 8 * g) * stride}')
            a(f's_add_u32 m0, s33, {(n % nslots) * 4096 + g * 1024}')
            a(f'buffer_load_dwordx4 v{VS + (g & 1)}, s[{srd}:{srd+3}], s34 offen lds', tok=f'{tag}d{n}')
    dep = nslots - 1
    for n in range(dep): dma(n)
    a(f'v_lshrrev_b32 v{t}, 6, v{L16}'); a(f'v_and_b32 v{t+1}, 7, v{t}'); a(f'v_lshlrev_b32 v{t+1}, 1, v{t+1}')
    a(f'v_bfe_u32 v{t+2}, v{L16}, 4, 1'); a(f'v_lshlrev_b32 v{t+2}, 3, v{t+2}'); a(f'v_lshl_add_u32 v{t+2}, v{t}, 8, v{t+2}')
    a(f's_lshl_b32 s34, s{SW}, 2'); a(f'v_bfe_u32 v{t+3}, v{L16}, 5, 1'); a(f'v_add_u32 v{t+3}, s34, v{t+3}')
    for tt in range(2):
        a(f'v_add_u32 v{t+4}, {2*tt}, v{t+3}'); a(f'v_xor_b32 v{t+4}, v{t+4}, v{t+1}'); a(f'v_lshl_add_u32 v{t+4}, v{t+4}, 4, v{t+2}')
        for rp in range(4): a(f'v_add_u32 v{TR+4*tt+rp}, {base + rp*wstride}, v{t+4}')
    for n, u in enumerate(units):
        a.wait_tok(f'{tag}d{n}')
        a('s_waitcnt lgkmcnt(0)'); a('s_barrier')
        if n + dep < len(units): dma(n + dep)
        k, b = u[3]
        for tt in range(2):
            for rp in range(4):
                a(f'ds_read_b64_tr_b16 {k}[{b+8*tt+2*rp}:{b+8*tt+2*rp+1}], v{TR+4*tt+rp} offset:{(n % nslots)*4096}')

def worker_setup(a):
    a('v_lshrrev_b32 v16, 6, v0'); a(f'v_readfirstlane_b32 s{SW}, v16')
    a('v_and_b32 v17, 63, v0')
    a(f'v_lshlrev_b32 v{L16}, 4, v17')
    a('v_lshrrev_b32 v18, 4, v17'); a('v_lshlrev_b32 v18, 1, v18'); a('v_mov_b32 v19, 0x78'); a('v_lshrrev_b32 v19, v18, v19'); a('v_xor_b32 v19, v19, v17'); a('v_and_b32 v19, 3, v19')
    a('v_lshrrev_b32 v20, 2, v17'); a(f'v_mul_u32_u24 v{VXS}, 1280, v20'); a(f'v_lshl_add_u32 v{VXS}, v19, 4, v{VXS}')
    a('v_bfe_u32 v18, v17, 2, 2'); a('v_lshlrev_b32 v18, 1, v18'); a('v_mov_b32 v19, 0x78'); a('v_lshrrev_b32 v19, v18, v19'); a('v_lshrrev_b32 v21, 4, v17'); a('v_xor_b32 v19, v19, v21'); a('v_and_b32 v19, 3, v19')
    a('v_and_b32 v20, 15, v17'); a(f'v_lshlrev_b32 v{VXR}, 6, v20'); a(f'v_lshl_add_u32 v{VXR}, v19, 4, v{VXR}')

def set_vtr(a, ring_s, sh=3):
    a(f'v_lshrrev_b32 v{VT0}, 6, v{L16}'); a(f'v_lshlrev_b32 v{VT0}, 6, v{VT0}'); a(f'v_bfe_u32 v{VT0+1}, v{L16}, 4, 2')
    a(f'v_lshl_add_u32 v{VTR}, v{VT0+1}, {sh}, v{VT0}'); a(f'v_add_u32 v{VTR}, s{ring_s}, v{VTR}')

def lane_rows(a, dst, gmul, rfun, stride):
    t = VT0
    a(f'v_lshrrev_b32 v{t}, 8, v{L16}'); a(f'v_mul_u32_u24 v{t}, {gmul}, v{t}')
    a(f'v_bfe_u32 v{t+1}, v{L16}, 6, 2')
    if rfun == 'r': a(f'v_add_u32 v{t}, v{t}, v{t+1}')
    else:
        a(f'v_lshrrev_b32 v{t+2}, 1, v{t+1}'); a(f'v_add_u32 v{t}, v{t}, v{t+2}'); a(f'v_and_b32 v{t+1}, 1, v{t+1}'); a(f'v_lshl_add_u32 v{t}, v{t+1}, 4, v{t}')
    a(f's_mov_b32 s34, {stride}'); a(f'v_mul_lo_u32 v{t}, v{t}, s34'); a(f'v_bfe_u32 v{t+1}, v{L16}, 4, 2'); a(f'v_lshl_add_u32 v{dst}, v{t+1}, 4, v{t}')

XB = 40960
PREF = False
NROUND = -(-64 // NWX)
RT = True
RTOFF = FLG + 0x200000
def rt(a, t=VT0+6):
    if RT == 'dbg':
        a('s_memrealtime s[72:73]'); a('s_waitcnt lgkmcnt(0)')
        a(f'v_mov_b32 v{t}, s75'); a(f'v_mov_b32 v{t+1}, s72'); a('s_add_u32 s75, s75, 4')
        a(f's_cmp_eq_u32 s{SW}, 0'); a('s_cselect_b32 s74, 0, 0x40000000')
        a('s_mov_b64 exec, 1')
        a(f'buffer_atomic_umax v{t+1}, v{t}, s[8:11], s74 offen')
        a('s_mov_b64 exec, -1')
        return
    if not RT: return
    a('s_memrealtime s[72:73]'); a('s_waitcnt lgkmcnt(0)')
    a(f's_lshl_b32 s74, s2, 2'); a(f's_add_u32 s74, s74, s{SW}'); a('s_lshl_b32 s74, s74, 7'); a(f's_add_u32 s74, s74, {RTOFF}')
    a('s_add_u32 s74, s74, s75'); a('s_add_u32 s75, s75, 4')
    a(f'v_mov_b32 v{t}, 0'); a(f'v_mov_b32 v{t+1}, s72')
    a(f'buffer_store_dword v{t+1}, v{t}, s[12:15], s74 offen')
def gen_gemm1(a, kind, P):
    stride = 3456 if kind == 'h' else 8192
    ostride = {'kq': 262144, 'v': 262144, 'h': 131072}[kind]
    WO = 12
    XA = 13
    ACC = 16
    XF = 48
    OUT = 80
    a(f's_mul_i32 s33, s{SW}, {7*4096}'); a(f's_add_u32 s33, s33, {XB}')
    a(f's_lshr_b32 s34, s{SW}, 1'); a('s_lshl_b32 s34, s34, 5'); a(f's_and_b32 s35, s{SW}, 1'); a('s_lshl_b32 s35, s35, 2'); a('s_add_u32 s34, s34, s35'); a(f's_mul_i32 s34, s34, {stride}')
    a('s_add_u32 s76, s44, s34'); a('s_add_u32 s77, s45, s34')
    a(f's_mul_i32 s50, s{SW}, 10240')
    a(f's_mul_i32 s51, s{SW}, 320')
    def xdma(n, buf_s, tile_s, tok):
        return [f's_add_u32 s34, s{tile_s}, {(n >> 1) * 64 + (n & 1) * 20480}', f's_add_u32 m0, s{buf_s}, {n * 1024}',
                (f'buffer_load_dwordx4 v{VXS}, s[16:19], s34 offen lds', tok)]
    def emit(p):
        if isinstance(p, tuple): a(p[0], tok=p[1])
        else: a(p)
    a(f's_mul_i32 s52, s46, 40960'); a('s_add_u32 s52, s52, s51'); a('s_mul_i32 s54, s47, 40960'); a('s_mov_b32 s53, s50')
    a('s_barrier')
    for n in range(10):
        for p in xdma(n, 53, 52, f'{P}x'): emit(p)
    units = [(36 + 4 * pr, 76 + pr, 64 * j, wreg(2 * j + pr, 4)) for j in range(10) for pr in range(2)]
    load_units_coop(a, units, 7, XB, 7 * 4096, stride, P + 'w')
    a('s_waitcnt vmcnt(0) lgkmcnt(0)'); a('s_barrier')
    rt(a)
    a('s_add_u32 s52, s52, s54'); a(f's_add_u32 s53, s50, {XB}')
    for n in range(10):
        for p in xdma(n, 53, 52, f'{P}x1'): emit(p)
    a('s_add_u32 s52, s52, s54'); a(f's_add_u32 s53, s50, {2*XB}')
    a(f's_mov_b32 s55, 0')
    a(f's_mul_i32 s56, s46, {ostride}'); a('s_add_u32 s56, s56, s48'); a(f's_mul_i32 s57, s47, {ostride}')
    a.label(f'{P}_tile')
    a(f'v_add_u32 v{XA}, s55, v{VXR}')
    side = []
    for n in range(10): side += [xdma(n, 53, 52, f'{P}xn')]
    def rdx(ks):
        for mt in range(2): a(f'ds_read_b128 {vr(XF + 8*(ks % 4) + 4*mt, 4)}, v{XA} offset:{(2*ks+mt)*1024}')
    rdx(0); rdx(1); rdx(2)
    for ks in range(20):
        j, kh = ks >> 1, ks & 1
        n = 0
        for pr in range(2):
            k, b = wreg(2 * j + pr, 4)
            for t in range(2):
                Wf = f'{k}[{b+8*t+4*kh}:{b+8*t+4*kh+3}]'
                for mt in range(2):
                    c = vr(ACC + 16 * mt + 8 * pr + 4 * t, 4); Xf = vr(XF + 8 * (ks % 4) + 4 * mt, 4)
                    A_, B_ = (Xf, Wf) if kind == 'v' else (Wf, Xf)
                    a(f'v_mfma_f32_16x16x32_bf16 {c}, {A_}, {B_}, {"0" if ks == 0 else c}')
                    n += 1
                    if n == 1 and ks + 3 < 20: rdx(ks + 3)
                    if n == 4 and side and ks >= 1:
                        for p in side.pop(0): emit(p)
    if kind == 'kq':
        for mt in range(2):
            for pr in range(2):
                o = OUT + 8 * mt + 4 * pr; b = ACC + 16 * mt + 8 * pr
                for r in range(4): a(f'v_cvt_pk_bf16_f32 v{o+r}, v{b+r}, v{b+4+r}')
                a(f's_add_u32 s35, s56, {pr*8192 + mt*4096}')
                a(f'buffer_store_dwordx4 {vr(o,4)}, v{L16}, s[12:15], s35 offen sc1')
    elif kind == 'v':
        for T in range(4):
            o = OUT + 4 * T
            for mt in range(2):
                b = ACC + 16 * mt + 4 * T
                a(f'v_cvt_pk_bf16_f32 v{o+2*mt}, v{b}, v{b+1}'); a(f'v_cvt_pk_bf16_f32 v{o+2*mt+1}, v{b+2}, v{b+3}')
            if T == 2: a('s_add_u32 s35, s56, 8192')
            a(f'buffer_store_dwordx4 {vr(o,4)}, v{L16}, s[12:15], s{35 if T >= 2 else 56} offen offset:{(T&1)*1024} sc1')
    else:
        a(f's_mov_b32 s35, {f2u(-LOG2E):#x}')
        for mt in range(2):
            G = ACC + 16 * mt; U = G + 8; E = OUT + 8
            for r in range(8): a(f'v_mul_f32 v{E+r}, s35, v{G+r}')
            for r in range(8): a(f'v_exp_f32 v{E+r}, v{E+r}')
            for r in range(8): a(f'v_mul_f32 v{G+r}, v{G+r}, v{U+r}')
            for r in range(8): a(f'v_add_f32 v{E+r}, 1.0, v{E+r}')
            for r in range(8): a(f'v_rcp_f32 v{E+r}, v{E+r}')
            for r in range(8): a(f'v_mul_f32 v{G+r}, v{G+r}, v{E+r}')
            o = OUT + 4 * mt
            for r in range(4): a(f'v_cvt_pk_bf16_f32 v{o+r}, v{G+r}, v{G+4+r}')
            if mt == 1: a('s_add_u32 s58, s56, 65536')
            a(f'buffer_store_dwordx4 {vr(o,4)}, v{L16}, s[12:15], s{58 if mt else 56} offen sc1')
    nst = 2 if kind == 'h' else 4
    a('s_add_u32 s46, s46, s47'); a('s_add_u32 s52, s52, s54'); a('s_add_u32 s56, s56, s57')
    a(f's_add_u32 s53, s55, s50')
    a(f's_add_u32 s55, s55, {XB}'); a(f's_cmp_eq_u32 s55, {3*XB}'); a('s_cselect_b32 s55, 0, s55')
    a(f's_waitcnt vmcnt({10 + nst})')
    if kind != 'h':
        a('s_cmp_lg_u32 s59, 0'); a(f's_cbranch_scc1 {P}_nw'); a('s_waitcnt vmcnt(0)'); a.label(f'{P}_nw')
    a('s_barrier')
    if kind != 'h':
        a('s_add_u32 s59, s59, 1')
        a(f's_cmp_lg_u32 s{SW}, 0'); a(f's_cbranch_scc1 {P}_nosig')
        a('s_cmp_eq_u32 s59, 1'); a(f's_cselect_b32 s35, {D_KVR}, 0')
        a(f's_cmp_eq_u32 s59, {KVROUNDS[1]+1}'); a(f's_cselect_b32 s35, {D_KVR+4}, s35')
        a('s_cmp_eq_u32 s35, 0'); a(f's_cbranch_scc1 {P}_nosig')
        a(f'v_mov_b32 v{VT0}, s35'); a(f'v_mov_b32 v{VT0+1}, 1')
        a('s_mov_b64 exec, 1')
        a(f'buffer_atomic_add v{VT0+1}, v{VT0}, s[8:11], 0 offen')
        a('s_mov_b64 exec, -1')
        a.label(f'{P}_nosig')
    a('s_cmp_lt_u32 s46, 64'); a(f's_cbranch_scc1 {P}_tile')
    a('s_waitcnt vmcnt(0)')

def signal(a, off):
    lab = a.newlabel('LSG')
    a('s_barrier')
    a(f's_cmp_lg_u32 s{SW}, 0'); a(f's_cbranch_scc1 {lab}')
    a(f'v_mov_b32 v{VT0}, {off}'); a(f'v_mov_b32 v{VT0+1}, 1')
    a('s_mov_b64 exec, 1')
    a(f'buffer_atomic_add v{VT0+1}, v{VT0}, s[8:11], 0 offen')
    a('s_mov_b64 exec, -1')
    a.label(lab)

def wait_dbg(a, off, target, lab, fail, t=VT0):
    a(f's_cmp_lg_u32 s{SW}, 0'); a(f's_cbranch_scc1 {lab}_ok')
    a(f'v_mov_b32 v{t}, {off}'); a('s_mov_b32 s34, 0')
    a.label(lab)
    a(f'buffer_load_dword v{t+1}, v{t}, s[8:11], 0 offen sc1')
    a('s_add_u32 s34, s34, 1'); a('s_cmp_gt_u32 s34, 2000000'); a(f's_cbranch_scc1 {fail}')
    a(f'v_readfirstlane_b32 s35, v{t+1}'); a(f's_cmp_ge_u32 s35, {target}'); a(f's_cbranch_scc1 {lab}_ok')
    a('s_sleep 16'); a(f's_branch {lab}')
    a.label(lab + '_ok')
    a('s_barrier')

def kv_wait(a, need_s, ready_s, lab, fail, t, l16):
    a(f'v_lshrrev_b32 v{t}, 2, v{l16}'); a(f'v_min_u32 v{t}, 12, v{t}'); a('s_mov_b32 s34, 0')
    a.label(lab)
    a(f'buffer_load_dword v{t+1}, v{t}, s[8:11], 0 offen offset:{D_KVR} sc1')
    a('s_add_u32 s34, s34, 1'); a('s_cmp_gt_u32 s34, 2000000'); a(f's_cbranch_scc1 {fail}')
    a(f'v_cmp_gt_u32 vcc, {NWG}, v{t+1}')
    a('s_ff1_i32_b64 s35, vcc'); a('s_lshl_b32 s35, s35, 3'); a(f's_lshr_b32 s{ready_s}, {(64 << 24) | (KVROUNDS[1]*NWX << 16) | (KVROUNDS[0]*NWX << 8):#x}, s35'); a(f's_and_b32 s{ready_s}, s{ready_s}, 255')
    a(f's_cmp_gt_u32 s{ready_s}, s{need_s}'); a(f's_cbranch_scc1 {lab}_ok')
    a('s_sleep 8'); a(f's_branch {lab}')
    a.label(lab + '_ok')

def gen_gate(a, nwaves):
    GW, XF, D = 16, 96, 176
    a(f'v_lshrrev_b32 v{VT0}, 8, v{L16}'); a(f'v_lshlrev_b32 v{VT0}, 4, v{VT0}')
    for ks in range(20): a(f'buffer_load_dwordx4 {vr(GW+4*ks,4)}, v{VT0}, s[36:39], 0 offen offset:{64*ks}')
    a(f'v_bfe_u32 v{VT0+1}, v{L16}, 4, 4'); a(f'v_mul_u32_u24 v{VT0+2}, 1280, v{VT0+1}'); a(f'v_add_u32 v{VT0+2}, v{VT0+2}, v{VT0}')
    a(f'v_lshlrev_b32 v{VT0+3}, 2, v{VT0+1}')
    a(f's_mov_b32 s35, {f2u(-LOG2E):#x}')
    a.label('LG_loop')
    a('s_mul_i32 s50, s46, 20480'); a('s_lshl_b32 s51, s46, 6'); a(f's_add_u32 s51, s51, {GG}')
    for ks in range(20): a(f'buffer_load_dwordx4 {vr(XF+4*ks,4)}, v{VT0+2}, s[16:19], s50 offen offset:{64*ks}')
    for ks in range(20): a(f'v_mfma_f32_16x16x32_bf16 {vr(D,4)}, {vr(GW+4*ks,4)}, {vr(XF+4*ks,4)}, {"0" if ks == 0 else vr(D,4)}')
    a(f'v_mul_f32 v{D}, s35, v{D}'); a(f'v_exp_f32 v{D}, v{D}'); a(f'v_add_f32 v{D}, 1.0, v{D}'); a(f'v_rcp_f32 v{D}, v{D}')
    a('s_mov_b64 exec, 0xffff')
    a(f'buffer_store_dword v{D}, v{VT0+3}, s[12:15], s51 offen sc1')
    a('s_mov_b64 exec, -1')
    a(f's_add_u32 s46, s46, {nwaves}'); a('s_cmp_lt_u32 s46, 128'); a('s_cbranch_scc1 LG_loop')
    a('s_waitcnt vmcnt(0)')

def gen_phase1(a):
    a('s_load_dwordx2 s[20:21], s[0:1], 0')
    a('s_load_dwordx4 s[24:27], s[0:1], 24')
    a('s_load_dwordx2 s[22:23], s[0:1], 16')
    a('s_load_dwordx4 s[60:63], s[0:1], 64')
    a('s_load_dwordx2 s[64:65], s[0:1], 88')
    a('s_load_dwordx2 s[28:29], s[0:1], 40')
    worker_setup(a)
    a('s_mov_b32 s75, 16' if RT == 'dbg' else 's_mov_b32 s75, 0'); rt(a)
    a(f'v_mov_b32 v{VT0}, 0'); a(f'v_lshrrev_b32 v{VT0+1}, 2, v{L16}')
    a(f's_lshl_b32 s34, s{SU}, 7'); a(f's_add_u32 s34, s34, {FLG}')
    a('s_mov_b64 exec, 0xffffffff')
    a(f'buffer_store_dword v{VT0}, v{VT0+1}, s[12:15], s34 offen sc1')
    a('s_mov_b64 exec, -1')
    a('s_waitcnt lgkmcnt(0)')
    a.srd(16, 20, 2621440)
    if PREF:
        per = 5242880 // (NWG * 4)
        a.srd(36, 22, 5242880); a.srd(40, 28, 5242880)
        a(f's_lshl_b32 s34, s{SU}, 2'); a(f's_add_u32 s34, s34, s{SW}'); a(f's_mul_i32 s34, s34, {per}'); a('s_and_b32 s34, s34, 0xffffff80'); a('s_add_u32 s35, s34, 4096')
        for srd in (36, 40):
            for i in range(7): a(f'buffer_load_dwordx4 v[{96+4*i}:{99+4*i}], v{L16}, s[{srd}:{srd+3}], s{34 if i < 4 else 35} offen offset:{(i%4)*1024} nt')
    a(f's_mul_i32 s66, s{SU}, {65536 // NWX + 1}'); a('s_lshr_b32 s66, s66, 16'); a(f's_mul_i32 s34, s66, {NWX}'); a(f's_sub_u32 s67, s{SU}, s34')
    a('s_mov_b32 s46, s67'); a(f's_mov_b32 s47, {NWX}')
    a('s_and_b32 s68, s66, 15'); a('s_lshl_b32 s44, s68, 9'); a('s_add_u32 s45, s44, 256')
    a('s_lshl_b32 s69, s68, 14')
    a(f's_mov_b32 s70, s{SW}'); a('s_mov_b32 s59, 0')
    a('s_cmp_ge_u32 s66, 16'); a('s_cbranch_scc1 LW_v')
    a.srd(36, 24, 5242880); a.srd(40, 24, 5242880)
    a('s_lshl_b32 s48, s70, 10'); a('s_add_u32 s48, s48, s69'); a(f's_add_u32 s48, s48, {KXG}')
    a('s_mov_b32 s71, 0')
    a.label('LW_kq')
    gen_gemm1(a, 'kq', 'LK')
    a('s_cmp_eq_u32 s71, 1'); a('s_cbranch_scc1 LW_p1b_done')
    a('s_branch LW_p1a_done')
    a.label('LW_v')
    a.srd(36, 26, 5242880); a.srd(40, 26, 5242880)
    a('s_lshl_b32 s48, s70, 11'); a('s_add_u32 s48, s48, s69'); a(f's_add_u32 s48, s48, {VXG}')
    gen_gemm1(a, 'v', 'LV')
    a.label('LW_p1a_done')
    signal(a, D_KVR + 8)
    rt(a)
    a('s_mov_b32 s46, s67'); a(f's_mov_b32 s47, {NWX}')
    a('s_cmp_ge_u32 s66, 16'); a('s_cbranch_scc1 LW_h')
    a.srd(36, 22, 5242880); a.srd(40, 22, 5242880)
    a('s_lshl_b32 s48, s70, 10'); a('s_add_u32 s48, s48, s69'); a(f's_add_u32 s48, s48, {QXG}')
    a('s_mov_b32 s71, 1')
    a('s_branch LW_kq')
    a.label('LW_h')
    a('s_cmp_ge_u32 s66, 30'); a('s_cbranch_scc1 LW_gate')
    a.srd(36, 60, 2211840); a.srd(40, 62, 2211840)
    a('s_lshl_b32 s34, s68, 2'); a(f's_add_u32 s34, s34, s{SW}')
    a('s_lshl_b32 s44, s68, 8'); a('s_mov_b32 s45, s44')
    a('s_lshl_b32 s48, s34, 10'); a(f's_add_u32 s48, s48, {HG}')
    gen_gemm1(a, 'h', 'LH')
    a('s_branch LW_p1b_done')
    a.label('LW_gate')
    a.srd(36, 64, 1280)
    a(f's_sub_u32 s46, s{SU}, {30*NWX}'); a('s_lshl_b32 s46, s46, 2'); a(f's_add_u32 s46, s46, s{SW}')
    gen_gate(a, 8 * NWX)
    a.label('LW_p1b_done')
    signal(a, D_P1B)
    rt(a)


def lastrt(a, slot):
    if RT is not True: return
    a('s_mov_b32 s76, s75' if False else f's_mov_b32 s71, s75'); a(f's_mov_b32 s75, {4*slot}'); rt(a); a('s_mov_b32 s75, s71')

def poll_ws(a, t, soff, cond_fn, lab, fail, width=1, sleep=4, far=None):
    a(f'v_and_b32 v{t}, {0 if width == 1 else 16}, v{L16}'); a('s_mov_b32 s34, 0')
    a.label(lab)
    if width == 1: a(f'buffer_load_dword v{t+2}, v{t}, s[12:15], s{soff} offen sc1')
    else: a(f'buffer_load_dwordx4 {vr(t+2,4)}, v{t}, s[12:15], s{soff} offen sc1')
    a('s_add_u32 s34, s34, 1'); a('s_cmp_gt_u32 s34, 4000000'); a(f's_cbranch_scc1 {fail}')
    cond_fn()
    a(f's_cbranch_scc1 {lab}_ok')
    a(f's_sleep {sleep}')
    if far: far()
    a(f's_branch {lab}')
    a.label(lab + '_ok')

def gen_attn(a, fail):
    QF, KF, VF, KM, VM, SS, O, T = 16, 32, 64, 96, 112, 120, 136, 168
    SA, SB, SM = SS, SS + 4, SS + 8
    a(f's_mov_b32 s54, {f2u(SCL):#x}')
    a(f'v_bfe_u32 v{T}, v{L16}, 4, 4'); a('s_lshl_b32 s34, s58, 4'); a(f'v_add_u32 v{T}, s34, v{T}')
    a(f'v_lshrrev_b32 v{T+1}, 8, v{L16}'); a(f'v_lshlrev_b32 v{T+1}, 2, v{T+1}')
    for i in range(8):
        a(f'v_add_u32 v{T+2}, {16*(i>>2) + (i&3)}, v{T+1}'); a(f'v_cmp_le_u32 s[{76+2*i}:{77+2*i}], v{T+2}, v{T}')
    a(f'v_mov_b32 v{VT0+8}, 0xff800000'); a(f'v_lshrrev_b32 v{VT0+9}, 1, v{L16}')
    NEG, L8 = VT0 + 8, VT0 + 9
    a('s_lshl_b32 s48, s47, 13'); a('s_lshl_b32 s49, s47, 7'); a(f's_add_u32 s49, s49, {FLG}')
    a('s_lshl_b32 s50, s47, 12'); a('s_lshl_b32 s34, s58, 17'); a('s_add_u32 s50, s50, s34'); a(f's_add_u32 s50, s50, {OG}')
    a('s_lshl_b32 s57, s58, 12'); a(f's_add_u32 s57, s57, {QXG}')
    a('s_lshl_b32 s60, s58, 6'); a(f's_add_u32 s60, s60, {FLG + 32*128}')
    a(f's_cmp_eq_u32 s{SW}, 0'); a('s_cselect_b32 s60, s60, 0x40000000')
    MX, M, M2, LX, AL = T, T + 1, T + 2, T + 3, T + 4
    BT, PM = T + 8, T + 12
    def xred(op, m):
        for sw in ('v_permlane16_swap_b32', 'v_permlane32_swap_b32'):
            a(f'v_mov_b32 v{M2}, v{m}'); a(f'{sw} v{m}, v{M2}'); a(f'{op} v{m}, v{m}, v{M2}')
    a(f'v_mov_b32 v{PM+1}, 0'); a(f'v_mov_b32 v{PM+2}, 0')
    a.label('LA_loop')
    a('s_lshl_b32 s51, s46, 18'); a('s_add_u32 s52, s51, s48')
    a('s_add_u32 s53, s52, s57')
    for i in range(4): a(f'buffer_load_dwordx4 {vr(QF+4*i,4)}, v{L16}, s[12:15], s53 offen offset:{i*1024} sc1')
    for base, off in ((KF, KXG), (VF, VXG)):
        a(f's_add_u32 s53, s52, {off}'); a(f's_add_u32 s55, s53, 4096')
        for i in range(8): a(f'buffer_load_dwordx4 {vr(base+4*i,4)}, v{L16}, s[12:15], s{53 if i < 4 else 55} offen offset:{(i&3)*1024} sc1')
    for kt in range(2):
        for f in range(4): a(f'v_mfma_f32_16x16x32_bf16 {vr(SS+4*kt,4)}, {vr(KF+16*kt+4*f,4)}, {vr(QF+4*f,4)}, {"0" if f == 0 else vr(SS+4*kt,4)}')
    for i in range(8): a(f'v_cndmask_b32 v{SS+i}, v{NEG}, v{SS+i}, s[{76+2*i}:{77+2*i}]')
    a(f'v_max3_f32 v{MX}, v{SS}, v{SS+1}, v{SS+2}'); a(f'v_max3_f32 v{MX}, v{MX}, v{SS+3}, v{SS+4}'); a(f'v_max3_f32 v{MX}, v{MX}, v{SS+5}, v{SS+6}'); a(f'v_max_f32 v{MX}, v{MX}, v{SS+7}')
    xred('v_max_f32', MX)
    a(f'v_mul_f32 v{MX}, s54, v{MX}')
    for i in range(8): a(f'v_fma_f32 v{SS+i}, v{SS+i}, s54, -v{MX}')
    for i in range(8): a(f'v_exp_f32 v{SS+i}, v{SS+i}')
    for i in range(4): a(f'v_cvt_pk_bf16_f32 v{BT+i}, v{SS+2*i}, v{SS+2*i+1}')
    for Tt in range(8): a(f'v_mfma_f32_16x16x32_bf16 {vr(O+4*Tt,4)}, {vr(VF+4*Tt,4)}, {vr(BT,4)}, 0')
    a(f'v_add_f32 v{LX}, v{SS}, v{SS+1}')
    for i in range(2, 8): a(f'v_add_f32 v{LX}, v{LX}, v{SS+i}')
    def cond():
        a(f'v_min3_u32 v{VT0+2}, v{VT0+2}, v{VT0+3}, v{VT0+4}'); a(f'v_min_u32 v{VT0+2}, v{VT0+2}, v{VT0+5}')
        a(f'v_readlane_b32 s35, v{VT0+2}, 0'); a(f'v_readlane_b32 s56, v{VT0+2}, 1'); a('s_min_u32 s35, s35, s56'); a('s_cmp_gt_u32 s35, s46')
    def far():
        a('s_cmp_ge_u32 s35, s46'); a('s_cbranch_scc1 LA_p'); a('s_sleep 24')
    poll_ws(a, VT0, 49, cond, 'LA_p', fail, width=4, sleep=2, far=far)
    lastrt(a, 9)
    a(f's_add_u32 s53, s52, {KVM}'); a('s_add_u32 s55, s53, 4096')
    for f in range(4): a(f'buffer_load_dwordx4 {vr(KM+4*f,4)}, v{L16}, s[12:15], s53 offen offset:{f*1024} sc1')
    for w in range(4): a(f'buffer_load_dwordx2 {vr(VM+2*w,2)}, v{L8}, s[12:15], s55 offen offset:{w*512} sc1')
    a('s_add_u32 s53, s51, s50'); a('s_lshl_b32 s55, s46, 7'); a('s_add_u32 s55, s55, s60')
    a(f'v_mov_b32 v{VT0}, 0'); a(f'v_mov_b32 v{VT0+1}, 1')
    for f in range(4): a(f'v_mfma_f32_16x16x32_bf16 {vr(SM,4)}, {vr(KM+4*f,4)}, {vr(QF+4*f,4)}, {"0" if f == 0 else vr(SM,4)}')
    a(f'v_max_f32 v{M}, v{SM}, v{SM+1}')
    xred('v_max_f32', M)
    a(f'v_mul_f32 v{M}, s54, v{M}'); a(f'v_max_f32 v{M}, v{M}, v{MX}')
    a(f'v_fma_f32 v{SM}, v{SM}, s54, -v{M}'); a(f'v_fma_f32 v{SM+1}, v{SM+1}, s54, -v{M}'); a(f'v_sub_f32 v{AL}, v{MX}, v{M}')
    a(f'v_exp_f32 v{SM}, v{SM}'); a(f'v_exp_f32 v{SM+1}, v{SM+1}'); a(f'v_exp_f32 v{AL}, v{AL}')
    a(f'v_add_f32 v{M}, v{SM}, v{SM+1}'); a(f'v_fma_f32 v{M}, v{LX}, v{AL}, v{M}')
    xred('v_add_f32', M)
    a(f'v_rcp_f32 v{M}, v{M}')
    a(f'v_mul_f32 v{SM}, v{SM}, v{M}'); a(f'v_mul_f32 v{SM+1}, v{SM+1}, v{M}'); a(f'v_mul_f32 v{AL}, v{AL}, v{M}')
    a(f'v_cvt_pk_bf16_f32 v{PM}, v{SM}, v{SM+1}'); a(f'v_cvt_pk_bf16_f32 v{PM+3}, v{SM}, v{SM+1}')
    for r in range(0, 32, 2): a(f'v_pk_mul_f32 {vr(O+r,2)}, {vr(O+r,2)}, {vr(AL,2)} op_sel_hi:[1,0]')
    for Tt in range(8):
        d = vr(O + 4 * Tt, 4)
        a(f'v_mfma_f32_16x16x16_bf16 {d}, {vr(VM+2*(Tt>>1),2)}, {vr(PM+2*(Tt&1),2)}, {d}')
    for f in range(4):
        b = O + 8 * f
        for r in range(4): a(f'v_cvt_pk_bf16_f32 v{b+r}, v{b+r}, v{b+4+r}')
        a(f'buffer_store_dwordx4 {vr(b,4)}, v{L16}, s[12:15], s53 offen offset:{f*1024} sc1')
    lastrt(a, 10)
    a('s_waitcnt vmcnt(0)'); a('s_barrier')
    a('s_mov_b64 exec, 1')
    a(f'buffer_atomic_add v{VT0+1}, v{VT0}, s[12:15], s55 offen')
    a('s_mov_b64 exec, -1')
    a(f's_add_u32 s46, s46, {NWX//2}'); a('s_cmp_lt_u32 s46, 64'); a('s_cbranch_scc1 LA_loop')

def gen_proj_load(a):
    a('s_load_dwordx2 s[20:21], s[0:1], 40'); a('s_load_dwordx2 s[22:23], s[0:1], 80'); a('s_load_dwordx2 s[24:25], s[0:1], 96')
    a(f's_mul_i32 s33, s{SW}, {9*4096}')
    set_vtr(a, 33, 4)
    lane_rows(a, 12, 4, 'r16', 1280)
    a('s_waitcnt lgkmcnt(0)')
    a.srd(36, 20, 5242880); a.srd(40, 22, 2211840); a.srd(16, 24, 2621440)
    a(f's_lshl_b32 s34, s47, 6'); a(f's_mul_i32 s44, s{SW}, {1024*1280}'); a('s_add_u32 s44, s44, s34')
    a(f's_mul_i32 s45, s{SW}, {448*1280}'); a('s_add_u32 s45, s45, s34')
    a('s_barrier')
    units = []
    for n in range(23):
        j = n if n < 7 else n - 7
        loc = wreg(16 + n, 7) if n < 7 else wreg(n - 7, 7)
        units.append((40 if n < 7 else 36, 45 if n < 7 else 44, [(64 * j + 32 * (i >> 1) + 2 * (i & 1)) * 1280 for i in range(4)], 12, loc))
    load_units(a, units, 9, 33, 'pw', toff=8)
    a('s_waitcnt vmcnt(0) lgkmcnt(0)'); a('s_barrier')

def gen_proj(a, fail):
    AA, AB, RING, NR = 16, 24, 32, 28
    GV, VO, VLW = 12, 14, 15
    a(f'v_bfe_u32 v{VT0+6}, v{L16}, 4, 4'); a(f'v_mul_u32_u24 v{VO}, 1280, v{VT0+6}'); a(f'v_lshrrev_b32 v{VT0+7}, 8, v{L16}'); a(f'v_lshl_add_u32 v{VO}, v{VT0+7}, 4, v{VO}')
    a(f'v_lshlrev_b32 v{VXS}, 2, v{VT0+6}')
    a(f's_lshl_b32 s34, s{SW}, 11'); a(f'v_add_u32 v{VLW}, s34, v{L16}')
    a(f's_mul_i32 s48, s{SW}, {14*1024}'); a('s_lshl_b32 s34, s58, 16'); a('s_add_u32 s48, s48, s34'); a(f's_add_u32 s48, s48, {HG}')
    a(f's_lshl_b32 s49, s{SW}, 15'); a('s_lshl_b32 s34, s58, 17'); a('s_add_u32 s49, s49, s34'); a(f's_add_u32 s49, s49, {OG}')
    a('s_mul_i32 s50, s58, 20480'); a('s_lshl_b32 s34, s47, 6'); a('s_add_u32 s50, s50, s34')
    a(f's_lshl_b32 s60, s58, 6'); a(f's_add_u32 s60, s60, {GG}')
    def gemm(nks, base_s, acc, wloc):
        def ld(ks):
            if (ks & 3) == 0: a(f's_add_u32 s56, s{base_s}, {ks*1024}')
            a(f'buffer_load_dwordx4 {vr(RING+4*(ks % NR),4)}, v{L16}, s[12:15], s56 offen offset:{(ks&3)*1024} sc1')
        for n in range(min(NR, nks)): ld(n)
        for ks in range(nks):
            k, b = wloc(ks >> 1)
            for t in range(2):
                c = vr(acc + 4 * t, 4)
                a(f'v_mfma_f32_16x16x32_bf16 {c}, {k}[{b+8*t+4*(ks&1)}:{b+8*t+4*(ks&1)+3}], {vr(RING+4*(ks % NR),4)}, {"0" if ks == 0 else c}')
            if ks + NR < nks: ld(ks + NR)
    a.label('LP_loop')
    a('s_lshl_b32 s51, s46, 17'); a('s_add_u32 s51, s51, s48')
    a('s_lshl_b32 s52, s46, 18'); a('s_add_u32 s52, s52, s49')
    a('s_lshl_b32 s53, s46, 7'); a('s_add_u32 s54, s53, s60'); a(f's_add_u32 s53, s54, {FLG + 32*128 - GG}')
    a(f'buffer_load_dword v{GV}, v{VXS}, s[12:15], s54 offen sc1')
    gemm(14, 51, AB, lambda j: wreg(16 + j, 7))
    a(f'v_sub_f32 v{VT0+6}, 1.0, v{GV}')
    for r in range(8): a(f'v_mul_f32 v{AB+r}, v{AB+r}, v{VT0+6}')
    def cond():
        a(f'v_readfirstlane_b32 s35, v{VT0+2}'); a('s_cmp_ge_u32 s35, 8')
    a(f's_cmp_lg_u32 s{SW}, 0'); a('s_cbranch_scc1 LP_p_ok')
    poll_ws(a, VT0, 53, cond, 'LP_p', fail, sleep=2)
    a('s_barrier')
    lastrt(a, 9)
    gemm(32, 52, AA, lambda j: wreg(j, 7))
    for r in range(8): a(f'v_fma_f32 v{AB+r}, v{AA+r}, v{GV}, v{AB+r}')
    lastrt(a, 10)
    for q in range(2): a(f'ds_write_b128 v{VLW}, {vr(AB+4*q,4)} offset:{q*1024}')
    a('s_waitcnt lgkmcnt(0)'); a('s_barrier')
    a(f's_cmp_ge_u32 s{SW}, 1'); a('s_cbranch_scc1 LP_skip')
    for w in range(4):
        for t in range(2): a(f'ds_read_b128 {vr(RING+8*w+4*t,4)}, v{L16} offset:{w*2048 + t*1024}')
    for r in range(8):
        a(f'v_add_f32 v{RING+r}, v{RING+r}, v{RING+8+r}'); a(f'v_add_f32 v{RING+16+r}, v{RING+16+r}, v{RING+24+r}')
    for r in range(8): a(f'v_add_f32 v{RING+r}, v{RING+r}, v{RING+16+r}')
    for i in range(4): a(f'v_cvt_pk_bf16_f32 v{RING+32+i}, v{RING+2*i}, v{RING+2*i+1}')
    a('s_mul_i32 s34, s46, 40960'); a('s_add_u32 s34, s34, s50')
    a(f'buffer_store_dwordx4 {vr(RING+32,4)}, v{VO}, s[16:19], s34 offen')
    a.label('LP_skip')
    a('s_barrier')
    a(f's_add_u32 s46, s46, {NWX//2}'); a('s_cmp_lt_u32 s46, 64'); a('s_cbranch_scc1 LP_loop')

DELAY = 0
def gen_worker(a, endlab):
    if DELAY:
        a(f's_mov_b32 s34, {DELAY}'); a.label('LW_dl'); a('s_sleep 32'); a('s_sub_u32 s34, s34, 1'); a('s_cmp_lg_u32 s34, 0'); a('s_cbranch_scc1 LW_dl')
    gen_phase1(a)
    a(f's_lshr_b32 s46, s{SU}, 5'); a(f's_and_b32 s47, s{SU}, 31')
    a('s_cmp_ge_u32 s47, 28'); a(f's_cbranch_scc1 {endlab}')
    a('s_cmp_ge_u32 s47, 20'); a('s_cbranch_scc1 LW_attn')
    gen_proj_load(a)
    rt(a)
    wait_dbg(a, D_P1B, NWG, 'LW_w1', endlab)
    rt(a)
    a('s_and_b32 s58, s46, 1'); a('s_lshr_b32 s46, s46, 1')
    gen_proj(a, endlab)
    rt(a)
    a(f's_branch {endlab}')
    a.label('LW_attn')
    a('s_sub_u32 s47, s47, 20'); a('s_lshl_b32 s47, s47, 2'); a(f's_add_u32 s47, s47, s{SW}')
    wait_dbg(a, D_P1B, NWG, 'LW_w2', endlab)
    rt(a)
    a('s_and_b32 s58, s46, 1'); a('s_lshr_b32 s46, s46, 1')
    gen_attn(a, endlab)
    rt(a)
```

```python
import sys
from al import *
from layout import *
import worker as W
import importlib
C = importlib.import_module(sys.argv[2])
opts = sys.argv[3:]
W.RT = 'dbg' if 'rtdbg' in opts else 'rt' in opts
for o in opts:
    if o.startswith('wdelay='): W.DELAY = int(o[7:])
W.PREF = 'pref' in opts
a = Asm()
a('s_load_dwordx2 s[4:5], s[0:1], 104'); a('s_load_dwordx2 s[6:7], s[0:1], 112')
a('s_cmp_ge_u32 s2, 256'); a('s_cbranch_scc1 LC_end')
a('s_waitcnt lgkmcnt(0)')
a.srd(8, 4, 256); a.srd(12, 6, 0x10000000)
a('s_lshr_b32 s30, s2, 3')
a('s_and_b32 s3, s2, 7'); a(f's_cmp_lt_u32 s3, {NX}'); a('s_cbranch_scc1 L_chain')
a(f's_sub_u32 s3, s3, {NX}'); a('s_lshl_b32 s3, s3, 5'); a('s_add_u32 s30, s30, s3')
W.gen_worker(a, 'L_wend')
a.label('L_wend')
a('s_endpgm')
a.label('L_chain')
if 'hrot' in opts: a('s_add_u32 s30, s30, 1'); a('s_and_b32 s30, s30, 31')
C.gen_chain(a, stamps=('stamps' in opts), exp=opts, full=True)
k = NAME + '_kernel'
open(sys.argv[1], 'w').write(kernel_wrap([(k, a.text(), 512, 256, 102)], [(k, (256,1,1), (256,1,1), 163840)]))
DOC = """; ---------------------------------------------------------------------------------------------------------
;  * 64 "chain" workgroups (id%8 < 2) run the 64-step memory recurrence: one head per workgroup, Wq/Wk/Wv and half of
;    Per step: q,k,v -> scores -> softmax (true max) -> PV -> Wo partial -> reduce-scatter -> all-gather.
;  * every spin loop is bounded; short s_nop / s_sleep runs are poll back-off only.
; ---------------------------------------------------------------------------------------------------------
"""
t = open(sys.argv[1]).read().replace('.amdgcn_target', DOC + '.amdgcn_target', 1)
open(sys.argv[1], 'w').write(t)
import align
align.align(sys.argv[1], 'LF_step', 'LF_nored')
```

```python
from al import *
from layout import *
import math, struct
def f2u(x): return struct.unpack('<I', struct.pack('<f', x))[0]
def vr(b, n): return f'v[{b}:{b+n-1}]'
LOG2E = math.log2(math.e)
SCL = (128 ** -0.5) * LOG2E
DPPM = 'row_mask:0xf bank_mask:0xf'
SW = 31
SU = 30
L16, VTR, VXS, VXR, VT0 = 0, 1, 2, 3, 4

def wreg(i, nv):
    return ('a', 16 * i) if i < 16 else ('v', 256 - 16 * nv + 16 * (i - 16))

def load_units(a, units, nslots, ringbase_s, tag, toff=32):
    def dma(n):
        srd, sb, imms, vo, _ = units[n]
        for i in range(4):
            a(f's_add_u32 s34, s{sb}, {imms[i]}')
            a(f's_add_u32 m0, s{ringbase_s}, {(n % nslots) * 4096 + i * 1024}')
            a(f'buffer_load_dwordx4 v{vo}, s[{srd}:{srd+3}], s34 offen lds', tok=f'{tag}d{n}')
    for n in range(min(nslots, len(units))): dma(n)
    for n, u in enumerate(units):
        a.wait_tok(f'{tag}d{n}')
        k, b = u[4]
        for t in range(2):
            for rp in range(4):
                a(f'ds_read_b64_tr_b16 {k}[{b+8*t+2*rp}:{b+8*t+2*rp+1}], v{VTR} offset:{(n % nslots)*4096 + rp*1024 + t*toff}', tok=f'{tag}t{n}')
        if n + nslots < len(units):
            a.wait_tok(f'{tag}t{n}')
            dma(n + nslots)

def load_units_coop(a, units, nslots, base, wstride, stride, tag, TR=96, VS=104):
    t = VT0
    a(f'v_lshrrev_b32 v{t}, 8, v{L16}'); a(f'v_bfe_u32 v{t+1}, v{L16}, 4, 4')
    a(f'v_lshlrev_b32 v{t+2}, 1, v{t}'); a(f'v_xor_b32 v{t+2}, v{t+2}, v{t+1}'); a(f'v_xor_b32 v{t+3}, 8, v{t+2}')
    a(f'v_mul_u32_u24 v{t}, {stride}, v{t}')
    a(f'v_lshl_add_u32 v{VS}, v{t+2}, 4, v{t}'); a(f'v_lshl_add_u32 v{VS+1}, v{t+3}, 4, v{t}')
    def dma(n):
        srd, sb, row0, _ = units[n]
        for g in range(4):
            a(f's_add_u32 s34, s{sb}, {(row0 + 8 * g) * stride}')
            a(f's_add_u32 m0, s33, {(n % nslots) * 4096 + g * 1024}')
            a(f'buffer_load_dwordx4 v{VS + (g & 1)}, s[{srd}:{srd+3}], s34 offen lds', tok=f'{tag}d{n}')
    dep = nslots - 1
    for n in range(dep): dma(n)
    a(f'v_lshrrev_b32 v{t}, 6, v{L16}'); a(f'v_and_b32 v{t+1}, 7, v{t}'); a(f'v_lshlrev_b32 v{t+1}, 1, v{t+1}')
    a(f'v_bfe_u32 v{t+2}, v{L16}, 4, 1'); a(f'v_lshlrev_b32 v{t+2}, 3, v{t+2}'); a(f'v_lshl_add_u32 v{t+2}, v{t}, 8, v{t+2}')
    a(f's_lshl_b32 s34, s{SW}, 2'); a(f'v_bfe_u32 v{t+3}, v{L16}, 5, 1'); a(f'v_add_u32 v{t+3}, s34, v{t+3}')
    for tt in range(2):
        a(f'v_add_u32 v{t+4}, {2*tt}, v{t+3}'); a(f'v_xor_b32 v{t+4}, v{t+4}, v{t+1}'); a(f'v_lshl_add_u32 v{t+4}, v{t+4}, 4, v{t+2}')
        for rp in range(4): a(f'v_add_u32 v{TR+4*tt+rp}, {base + rp*wstride}, v{t+4}')
    for n, u in enumerate(units):
        a.wait_tok(f'{tag}d{n}')
        a('s_waitcnt lgkmcnt(0)'); a('s_barrier')
        if n + dep < len(units): dma(n + dep)
        k, b = u[3]
        for tt in range(2):
            for rp in range(4):
                a(f'ds_read_b64_tr_b16 {k}[{b+8*tt+2*rp}:{b+8*tt+2*rp+1}], v{TR+4*tt+rp} offset:{(n % nslots)*4096}')

def worker_setup(a):
    a('v_lshrrev_b32 v16, 6, v0'); a(f'v_readfirstlane_b32 s{SW}, v16')
    a('v_and_b32 v17, 63, v0')
    a(f'v_lshlrev_b32 v{L16}, 4, v17')
    a('v_lshrrev_b32 v18, 4, v17'); a('v_lshlrev_b32 v18, 1, v18'); a('v_mov_b32 v19, 0x78'); a('v_lshrrev_b32 v19, v18, v19'); a('v_xor_b32 v19, v19, v17'); a('v_and_b32 v19, 3, v19')
    a('v_lshrrev_b32 v20, 2, v17'); a(f'v_mul_u32_u24 v{VXS}, 1280, v20'); a(f'v_lshl_add_u32 v{VXS}, v19, 4, v{VXS}')
    a('v_bfe_u32 v18, v17, 2, 2'); a('v_lshlrev_b32 v18, 1, v18'); a('v_mov_b32 v19, 0x78'); a('v_lshrrev_b32 v19, v18, v19'); a('v_lshrrev_b32 v21, 4, v17'); a('v_xor_b32 v19, v19, v21'); a('v_and_b32 v19, 3, v19')
    a('v_and_b32 v20, 15, v17'); a(f'v_lshlrev_b32 v{VXR}, 6, v20'); a(f'v_lshl_add_u32 v{VXR}, v19, 4, v{VXR}')

def set_vtr(a, ring_s, sh=3):
    a(f'v_lshrrev_b32 v{VT0}, 6, v{L16}'); a(f'v_lshlrev_b32 v{VT0}, 6, v{VT0}'); a(f'v_bfe_u32 v{VT0+1}, v{L16}, 4, 2')
    a(f'v_lshl_add_u32 v{VTR}, v{VT0+1}, {sh}, v{VT0}'); a(f'v_add_u32 v{VTR}, s{ring_s}, v{VTR}')

def lane_rows(a, dst, gmul, rfun, stride):
    t = VT0
    a(f'v_lshrrev_b32 v{t}, 8, v{L16}'); a(f'v_mul_u32_u24 v{t}, {gmul}, v{t}')
    a(f'v_bfe_u32 v{t+1}, v{L16}, 6, 2')
    if rfun == 'r': a(f'v_add_u32 v{t}, v{t}, v{t+1}')
    else:
        a(f'v_lshrrev_b32 v{t+2}, 1, v{t+1}'); a(f'v_add_u32 v{t}, v{t}, v{t+2}'); a(f'v_and_b32 v{t+1}, 1, v{t+1}'); a(f'v_lshl_add_u32 v{t}, v{t+1}, 4, v{t}')
    a(f's_mov_b32 s34, {stride}'); a(f'v_mul_lo_u32 v{t}, v{t}, s34'); a(f'v_bfe_u32 v{t+1}, v{L16}, 4, 2'); a(f'v_lshl_add_u32 v{dst}, v{t+1}, 4, v{t}')

XB = 40960
PREF = False
NROUND = -(-64 // NWX)
RT = True
RTOFF = FLG + 0x200000
def rt(a, t=VT0+6):
    if RT == 'dbg':
        a('s_memrealtime s[72:73]'); a('s_waitcnt lgkmcnt(0)')
        a(f'v_mov_b32 v{t}, s75'); a(f'v_mov_b32 v{t+1}, s72'); a('s_add_u32 s75, s75, 4')
        a(f's_cmp_eq_u32 s{SW}, 0'); a('s_cselect_b32 s74, 0, 0x40000000')
        a('s_mov_b64 exec, 1')
        a(f'buffer_atomic_umax v{t+1}, v{t}, s[8:11], s74 offen')
        a('s_mov_b64 exec, -1')
        return
    if not RT: return
    a('s_memrealtime s[72:73]'); a('s_waitcnt lgkmcnt(0)')
    a(f's_lshl_b32 s74, s2, 2'); a(f's_add_u32 s74, s74, s{SW}'); a('s_lshl_b32 s74, s74, 7'); a(f's_add_u32 s74, s74, {RTOFF}')
    a('s_add_u32 s74, s74, s75'); a('s_add_u32 s75, s75, 4')
    a(f'v_mov_b32 v{t}, 0'); a(f'v_mov_b32 v{t+1}, s72')
    a(f'buffer_store_dword v{t+1}, v{t}, s[12:15], s74 offen')
def gen_gemm1(a, kind, P):
    stride = 3456 if kind == 'h' else 8192
    ostride = {'kq': 262144, 'v': 262144, 'h': 131072}[kind]
    WO = 12
    XA = 13
    ACC = 16
    XF = 48
    OUT = 80
    a(f's_mul_i32 s33, s{SW}, {7*4096}'); a(f's_add_u32 s33, s33, {XB}')
    a(f's_lshr_b32 s34, s{SW}, 1'); a('s_lshl_b32 s34, s34, 5'); a(f's_and_b32 s35, s{SW}, 1'); a('s_lshl_b32 s35, s35, 2'); a('s_add_u32 s34, s34, s35'); a(f's_mul_i32 s34, s34, {stride}')
    a('s_add_u32 s76, s44, s34'); a('s_add_u32 s77, s45, s34')
    a(f's_mul_i32 s50, s{SW}, 10240')
    a(f's_mul_i32 s51, s{SW}, 320')
    def xdma(n, buf_s, tile_s, tok):
        return [f's_add_u32 s34, s{tile_s}, {(n >> 1) * 64 + (n & 1) * 20480}', f's_add_u32 m0, s{buf_s}, {n * 1024}',
                (f'buffer_load_dwordx4 v{VXS}, s[16:19], s34 offen lds', tok)]
    def emit(p):
        if isinstance(p, tuple): a(p[0], tok=p[1])
        else: a(p)
    a(f's_mul_i32 s52, s46, 40960'); a('s_add_u32 s52, s52, s51'); a('s_mul_i32 s54, s47, 40960'); a('s_mov_b32 s53, s50')
    a('s_barrier')
    for n in range(10):
        for p in xdma(n, 53, 52, f'{P}x'): emit(p)
    units = [(36 + 4 * pr, 76 + pr, 64 * j, wreg(2 * j + pr, 4)) for j in range(10) for pr in range(2)]
    load_units_coop(a, units, 7, XB, 7 * 4096, stride, P + 'w')
    a('s_waitcnt vmcnt(0) lgkmcnt(0)'); a('s_barrier')
    rt(a)
    a('s_add_u32 s52, s52, s54'); a(f's_add_u32 s53, s50, {XB}')
    for n in range(10):
        for p in xdma(n, 53, 52, f'{P}x1'): emit(p)
    a('s_add_u32 s52, s52, s54'); a(f's_add_u32 s53, s50, {2*XB}')
    a(f's_mov_b32 s55, 0')
    a(f's_mul_i32 s56, s46, {ostride}'); a('s_add_u32 s56, s56, s48'); a(f's_mul_i32 s57, s47, {ostride}')
    a.label(f'{P}_tile')
    a(f'v_add_u32 v{XA}, s55, v{VXR}')
    side = []
    for n in range(10): side += [xdma(n, 53, 52, f'{P}xn')]
    def rdx(ks):
        for mt in range(2): a(f'ds_read_b128 {vr(XF + 8*(ks % 4) + 4*mt, 4)}, v{XA} offset:{(2*ks+mt)*1024}')
    rdx(0); rdx(1); rdx(2)
    for ks in range(20):
        j, kh = ks >> 1, ks & 1
        n = 0
        for pr in range(2):
            k, b = wreg(2 * j + pr, 4)
            for t in range(2):
                Wf = f'{k}[{b+8*t+4*kh}:{b+8*t+4*kh+3}]'
                for mt in range(2):
                    c = vr(ACC + 16 * mt + 8 * pr + 4 * t, 4); Xf = vr(XF + 8 * (ks % 4) + 4 * mt, 4)
                    A_, B_ = (Xf, Wf) if kind == 'v' else (Wf, Xf)
                    a(f'v_mfma_f32_16x16x32_bf16 {c}, {A_}, {B_}, {"0" if ks == 0 else c}')
                    n += 1
                    if n == 1 and ks + 3 < 20: rdx(ks + 3)
                    if n == 4 and side and ks >= 1:
                        for p in side.pop(0): emit(p)
    if kind == 'kq':
        for mt in range(2):
            for pr in range(2):
                o = OUT + 8 * mt + 4 * pr; b = ACC + 16 * mt + 8 * pr
                for r in range(4): a(f'v_cvt_pk_bf16_f32 v{o+r}, v{b+r}, v{b+4+r}')
                a(f's_add_u32 s35, s56, {pr*8192 + mt*4096}')
                a(f'buffer_store_dwordx4 {vr(o,4)}, v{L16}, s[12:15], s35 offen sc1')
    elif kind == 'v':
        for T in range(4):
            o = OUT + 4 * T
            for mt in range(2):
                b = ACC + 16 * mt + 4 * T
                a(f'v_cvt_pk_bf16_f32 v{o+2*mt}, v{b}, v{b+1}'); a(f'v_cvt_pk_bf16_f32 v{o+2*mt+1}, v{b+2}, v{b+3}')
            if T == 2: a('s_add_u32 s35, s56, 8192')
            a(f'buffer_store_dwordx4 {vr(o,4)}, v{L16}, s[12:15], s{35 if T >= 2 else 56} offen offset:{(T&1)*1024} sc1')
    else:
        a(f's_mov_b32 s35, {f2u(-LOG2E):#x}')
        for mt in range(2):
            G = ACC + 16 * mt; U = G + 8; E = OUT + 8
            for r in range(8): a(f'v_mul_f32 v{E+r}, s35, v{G+r}')
            for r in range(8): a(f'v_exp_f32 v{E+r}, v{E+r}')
            for r in range(8): a(f'v_mul_f32 v{G+r}, v{G+r}, v{U+r}')
            for r in range(8): a(f'v_add_f32 v{E+r}, 1.0, v{E+r}')
            for r in range(8): a(f'v_rcp_f32 v{E+r}, v{E+r}')
            for r in range(8): a(f'v_mul_f32 v{G+r}, v{G+r}, v{E+r}')
            o = OUT + 4 * mt
            for r in range(4): a(f'v_cvt_pk_bf16_f32 v{o+r}, v{G+r}, v{G+4+r}')
            if mt == 1: a('s_add_u32 s58, s56, 65536')
            a(f'buffer_store_dwordx4 {vr(o,4)}, v{L16}, s[12:15], s{58 if mt else 56} offen sc1')
    nst = 2 if kind == 'h' else 4
    a('s_add_u32 s46, s46, s47'); a('s_add_u32 s52, s52, s54'); a('s_add_u32 s56, s56, s57')
    a(f's_add_u32 s53, s55, s50')
    a(f's_add_u32 s55, s55, {XB}'); a(f's_cmp_eq_u32 s55, {3*XB}'); a('s_cselect_b32 s55, 0, s55')
    a(f's_waitcnt vmcnt({10 + nst})')
    if kind != 'h':
        a('s_cmp_lg_u32 s59, 0'); a(f's_cbranch_scc1 {P}_nw'); a('s_waitcnt vmcnt(0)'); a.label(f'{P}_nw')
    a('s_barrier')
    if kind != 'h':
        a('s_add_u32 s59, s59, 1')
        a(f's_cmp_lg_u32 s{SW}, 0'); a(f's_cbranch_scc1 {P}_nosig')
        a('s_cmp_eq_u32 s59, 1'); a(f's_cselect_b32 s35, {D_KVR}, 0')
        a(f's_cmp_eq_u32 s59, {KVROUNDS[1]+1}'); a(f's_cselect_b32 s35, {D_KVR+4}, s35')
        a('s_cmp_eq_u32 s35, 0'); a(f's_cbranch_scc1 {P}_nosig')
        a(f'v_mov_b32 v{VT0}, s35'); a(f'v_mov_b32 v{VT0+1}, 1')
        a('s_mov_b64 exec, 1')
        a(f'buffer_atomic_add v{VT0+1}, v{VT0}, s[8:11], 0 offen')
        a('s_mov_b64 exec, -1')
        a.label(f'{P}_nosig')
    a('s_cmp_lt_u32 s46, 64'); a(f's_cbranch_scc1 {P}_tile')
    a('s_waitcnt vmcnt(0)')

def signal(a, off):
    lab = a.newlabel('LSG')
    a('s_barrier')
    a(f's_cmp_lg_u32 s{SW}, 0'); a(f's_cbranch_scc1 {lab}')
    a(f'v_mov_b32 v{VT0}, {off}'); a(f'v_mov_b32 v{VT0+1}, 1')
    a('s_mov_b64 exec, 1')
    a(f'buffer_atomic_add v{VT0+1}, v{VT0}, s[8:11], 0 offen')
    a('s_mov_b64 exec, -1')
    a.label(lab)

def wait_dbg(a, off, target, lab, fail, t=VT0):
    a(f's_cmp_lg_u32 s{SW}, 0'); a(f's_cbranch_scc1 {lab}_ok')
    a(f'v_mov_b32 v{t}, {off}'); a('s_mov_b32 s34, 0')
    a.label(lab)
    a(f'buffer_load_dword v{t+1}, v{t}, s[8:11], 0 offen sc1')
    a('s_add_u32 s34, s34, 1'); a('s_cmp_gt_u32 s34, 2000000'); a(f's_cbranch_scc1 {fail}')
    a(f'v_readfirstlane_b32 s35, v{t+1}'); a(f's_cmp_ge_u32 s35, {target}'); a(f's_cbranch_scc1 {lab}_ok')
    a('s_sleep 16'); a(f's_branch {lab}')
    a.label(lab + '_ok')
    a('s_barrier')

def kv_wait(a, need_s, ready_s, lab, fail, t, l16):
    a(f'v_lshrrev_b32 v{t}, 2, v{l16}'); a(f'v_min_u32 v{t}, 12, v{t}'); a('s_mov_b32 s34, 0')
    a.label(lab)
    a(f'buffer_load_dword v{t+1}, v{t}, s[8:11], 0 offen offset:{D_KVR} sc1')
    a('s_add_u32 s34, s34, 1'); a('s_cmp_gt_u32 s34, 2000000'); a(f's_cbranch_scc1 {fail}')
    a(f'v_cmp_gt_u32 vcc, {NWG}, v{t+1}')
    a('s_ff1_i32_b64 s35, vcc'); a('s_lshl_b32 s35, s35, 3'); a(f's_lshr_b32 s{ready_s}, {(64 << 24) | (KVROUNDS[1]*NWX << 16) | (KVROUNDS[0]*NWX << 8):#x}, s35'); a(f's_and_b32 s{ready_s}, s{ready_s}, 255')
    a(f's_cmp_gt_u32 s{ready_s}, s{need_s}'); a(f's_cbranch_scc1 {lab}_ok')
    a('s_sleep 8'); a(f's_branch {lab}')
    a.label(lab + '_ok')

def gen_gate(a, nwaves):
    GW, XF, D = 16, 96, 176
    a(f'v_lshrrev_b32 v{VT0}, 8, v{L16}'); a(f'v_lshlrev_b32 v{VT0}, 4, v{VT0}')
    for ks in range(20): a(f'buffer_load_dwordx4 {vr(GW+4*ks,4)}, v{VT0}, s[36:39], 0 offen offset:{64*ks}')
    a(f'v_bfe_u32 v{VT0+1}, v{L16}, 4, 4'); a(f'v_mul_u32_u24 v{VT0+2}, 1280, v{VT0+1}'); a(f'v_add_u32 v{VT0+2}, v{VT0+2}, v{VT0}')
    a(f'v_lshlrev_b32 v{VT0+3}, 2, v{VT0+1}')
    a(f's_mov_b32 s35, {f2u(-LOG2E):#x}')
    a.label('LG_loop')
    a('s_mul_i32 s50, s46, 20480'); a('s_lshl_b32 s51, s46, 6'); a(f's_add_u32 s51, s51, {GG}')
    for ks in range(20): a(f'buffer_load_dwordx4 {vr(XF+4*ks,4)}, v{VT0+2}, s[16:19], s50 offen offset:{64*ks}')
    for ks in range(20): a(f'v_mfma_f32_16x16x32_bf16 {vr(D,4)}, {vr(GW+4*ks,4)}, {vr(XF+4*ks,4)}, {"0" if ks == 0 else vr(D,4)}')
    a(f'v_mul_f32 v{D}, s35, v{D}'); a(f'v_exp_f32 v{D}, v{D}'); a(f'v_add_f32 v{D}, 1.0, v{D}'); a(f'v_rcp_f32 v{D}, v{D}')
    a('s_mov_b64 exec, 0xffff')
    a(f'buffer_store_dword v{D}, v{VT0+3}, s[12:15], s51 offen sc1')
    a('s_mov_b64 exec, -1')
    a(f's_add_u32 s46, s46, {nwaves}'); a('s_cmp_lt_u32 s46, 128'); a('s_cbranch_scc1 LG_loop')
    a('s_waitcnt vmcnt(0)')

def gen_phase1(a):
    a('s_load_dwordx2 s[20:21], s[0:1], 0')
    a('s_load_dwordx4 s[24:27], s[0:1], 24')
    a('s_load_dwordx2 s[22:23], s[0:1], 16')
    a('s_load_dwordx4 s[60:63], s[0:1], 64')
    a('s_load_dwordx2 s[64:65], s[0:1], 88')
    a('s_load_dwordx2 s[28:29], s[0:1], 40')
    worker_setup(a)
    a('s_mov_b32 s75, 16' if RT == 'dbg' else 's_mov_b32 s75, 0'); rt(a)
    a(f'v_mov_b32 v{VT0}, 0'); a(f'v_lshrrev_b32 v{VT0+1}, 2, v{L16}')
    a(f's_lshl_b32 s34, s{SU}, 7'); a(f's_add_u32 s34, s34, {FLG}')
    a('s_mov_b64 exec, 0xffffffff')
    a(f'buffer_store_dword v{VT0}, v{VT0+1}, s[12:15], s34 offen sc1')
    a('s_mov_b64 exec, -1')
    a('s_waitcnt lgkmcnt(0)')
    a.srd(16, 20, 2621440)
    if PREF:
        per = 5242880 // (NWG * 4)
        a.srd(36, 22, 5242880); a.srd(40, 28, 5242880)
        a(f's_lshl_b32 s34, s{SU}, 2'); a(f's_add_u32 s34, s34, s{SW}'); a(f's_mul_i32 s34, s34, {per}'); a('s_and_b32 s34, s34, 0xffffff80'); a('s_add_u32 s35, s34, 4096')
        for srd in (36, 40):
            for i in range(7): a(f'buffer_load_dwordx4 v[{96+4*i}:{99+4*i}], v{L16}, s[{srd}:{srd+3}], s{34 if i < 4 else 35} offen offset:{(i%4)*1024} nt')
    a(f's_mul_i32 s66, s{SU}, {65536 // NWX + 1}'); a('s_lshr_b32 s66, s66, 16'); a(f's_mul_i32 s34, s66, {NWX}'); a(f's_sub_u32 s67, s{SU}, s34')
    a('s_mov_b32 s46, s67'); a(f's_mov_b32 s47, {NWX}')
    a('s_and_b32 s68, s66, 15'); a('s_lshl_b32 s44, s68, 9'); a('s_add_u32 s45, s44, 256')
    a('s_lshl_b32 s69, s68, 14')
    a(f's_mov_b32 s70, s{SW}'); a('s_mov_b32 s59, 0')
    a('s_cmp_ge_u32 s66, 16'); a('s_cbranch_scc1 LW_v')
    a.srd(36, 24, 5242880); a.srd(40, 24, 5242880)
    a('s_lshl_b32 s48, s70, 10'); a('s_add_u32 s48, s48, s69'); a(f's_add_u32 s48, s48, {KXG}')
    a('s_mov_b32 s71, 0')
    a.label('LW_kq')
    gen_gemm1(a, 'kq', 'LK')
    a('s_cmp_eq_u32 s71, 1'); a('s_cbranch_scc1 LW_p1b_done')
    a('s_branch LW_p1a_done')
    a.label('LW_v')
    a.srd(36, 26, 5242880); a.srd(40, 26, 5242880)
    a('s_lshl_b32 s48, s70, 11'); a('s_add_u32 s48, s48, s69'); a(f's_add_u32 s48, s48, {VXG}')
    gen_gemm1(a, 'v', 'LV')
    a.label('LW_p1a_done')
    signal(a, D_KVR + 8)
    rt(a)
    a('s_mov_b32 s46, s67'); a(f's_mov_b32 s47, {NWX}')
    a('s_cmp_ge_u32 s66, 16'); a('s_cbranch_scc1 LW_h')
    a.srd(36, 22, 5242880); a.srd(40, 22, 5242880)
    a('s_lshl_b32 s48, s70, 10'); a('s_add_u32 s48, s48, s69'); a(f's_add_u32 s48, s48, {QXG}')
    a('s_mov_b32 s71, 1')
    a('s_branch LW_kq')
    a.label('LW_h')
    a('s_cmp_ge_u32 s66, 30'); a('s_cbranch_scc1 LW_gate')
    a.srd(36, 60, 2211840); a.srd(40, 62, 2211840)
    a('s_lshl_b32 s34, s68, 2'); a(f's_add_u32 s34, s34, s{SW}')
    a('s_lshl_b32 s44, s68, 8'); a('s_mov_b32 s45, s44')
    a('s_lshl_b32 s48, s34, 10'); a(f's_add_u32 s48, s48, {HG}')
    gen_gemm1(a, 'h', 'LH')
    a('s_branch LW_p1b_done')
    a.label('LW_gate')
    a.srd(36, 64, 1280)
    a(f's_sub_u32 s46, s{SU}, {30*NWX}'); a('s_lshl_b32 s46, s46, 2'); a(f's_add_u32 s46, s46, s{SW}')
    gen_gate(a, 8 * NWX)
    a.label('LW_p1b_done')
    signal(a, D_P1B)
    rt(a)


def lastrt(a, slot):
    if RT is not True: return
    a('s_mov_b32 s76, s75' if False else f's_mov_b32 s71, s75'); a(f's_mov_b32 s75, {4*slot}'); rt(a); a('s_mov_b32 s75, s71')

def poll_ws(a, t, soff, cond_fn, lab, fail, width=1, sleep=4, far=None):
    a(f'v_and_b32 v{t}, {0 if width == 1 else 128}, v{L16}'); a('s_mov_b32 s34, 0')
    a.label(lab)
    if width <= 2: a(f'buffer_load_dword v{t+2}, v{t}, s[12:15], s{soff} offen sc1')
    else: a(f'buffer_load_dwordx4 {vr(t+2,4)}, v{t}, s[12:15], s{soff} offen sc1')
    a('s_add_u32 s34, s34, 1'); a('s_cmp_gt_u32 s34, 4000000'); a(f's_cbranch_scc1 {fail}')
    cond_fn()
    a(f's_cbranch_scc1 {lab}_ok')
    a(f's_sleep {sleep}')
    if far: far()
    a(f's_branch {lab}')
    a.label(lab + '_ok')

def gen_attn(a, fail):
    QF, KF, VF, KM, VM, SS, O, T = 16, 32, 64, 96, 112, 120, 136, 168
    SA, SB, SM = SS, SS + 4, SS + 8
    a(f's_mov_b32 s54, {f2u(SCL):#x}')
    a(f'v_bfe_u32 v{T}, v{L16}, 4, 4'); a('s_lshl_b32 s34, s58, 4'); a(f'v_add_u32 v{T}, s34, v{T}')
    a(f'v_lshrrev_b32 v{T+1}, 8, v{L16}'); a(f'v_lshlrev_b32 v{T+1}, 2, v{T+1}')
    for i in range(8):
        a(f'v_add_u32 v{T+2}, {16*(i>>2) + (i&3)}, v{T+1}'); a(f'v_cmp_le_u32 s[{76+2*i}:{77+2*i}], v{T+2}, v{T}')
    a(f'v_mov_b32 v{VT0+8}, 0xff800000'); a(f'v_lshrrev_b32 v{VT0+9}, 1, v{L16}')
    NEG, L8 = VT0 + 8, VT0 + 9
    a('s_lshl_b32 s48, s47, 13'); a('s_lshl_b32 s49, s47, 8'); a(f's_add_u32 s49, s49, {FLG + 128*128}')
    a('s_lshl_b32 s50, s47, 12'); a('s_lshl_b32 s34, s58, 17'); a('s_add_u32 s50, s50, s34'); a(f's_add_u32 s50, s50, {OG}')
    a('s_lshl_b32 s57, s58, 12'); a(f's_add_u32 s57, s57, {QXG}')
    a('s_lshl_b32 s60, s58, 6'); a(f's_add_u32 s60, s60, {FLG + 32*128}')
    a(f's_cmp_eq_u32 s{SW}, 0'); a('s_cselect_b32 s60, s60, 0x40000000')
    MX, M, M2, LX, AL = T, T + 1, T + 2, T + 3, T + 4
    BT, PM = T + 8, T + 12
    def xred(op, m):
        for sw in ('v_permlane16_swap_b32', 'v_permlane32_swap_b32'):
            a(f'v_mov_b32 v{M2}, v{m}'); a(f'{sw} v{m}, v{M2}'); a(f'{op} v{m}, v{m}, v{M2}')
    a(f'v_mov_b32 v{PM+1}, 0'); a(f'v_mov_b32 v{PM+2}, 0')
    a.label('LA_loop')
    a('s_lshl_b32 s51, s46, 18'); a('s_add_u32 s52, s51, s48')
    a('s_add_u32 s53, s52, s57')
    for i in range(4): a(f'buffer_load_dwordx4 {vr(QF+4*i,4)}, v{L16}, s[12:15], s53 offen offset:{i*1024} sc1')
    for base, off in ((KF, KXG), (VF, VXG)):
        a(f's_add_u32 s53, s52, {off}'); a(f's_add_u32 s55, s53, 4096')
        for i in range(8): a(f'buffer_load_dwordx4 {vr(base+4*i,4)}, v{L16}, s[12:15], s{53 if i < 4 else 55} offen offset:{(i&3)*1024} sc1')
    for kt in range(2):
        for f in range(4): a(f'v_mfma_f32_16x16x32_bf16 {vr(SS+4*kt,4)}, {vr(KF+16*kt+4*f,4)}, {vr(QF+4*f,4)}, {"0" if f == 0 else vr(SS+4*kt,4)}')
    for i in range(8): a(f'v_cndmask_b32 v{SS+i}, v{NEG}, v{SS+i}, s[{76+2*i}:{77+2*i}]')
    a(f'v_max3_f32 v{MX}, v{SS}, v{SS+1}, v{SS+2}'); a(f'v_max3_f32 v{MX}, v{MX}, v{SS+3}, v{SS+4}'); a(f'v_max3_f32 v{MX}, v{MX}, v{SS+5}, v{SS+6}'); a(f'v_max_f32 v{MX}, v{MX}, v{SS+7}')
    xred('v_max_f32', MX)
    a(f'v_mul_f32 v{MX}, s54, v{MX}')
    for i in range(8): a(f'v_fma_f32 v{SS+i}, v{SS+i}, s54, -v{MX}')
    for i in range(8): a(f'v_exp_f32 v{SS+i}, v{SS+i}')
    for i in range(4): a(f'v_cvt_pk_bf16_f32 v{BT+i}, v{SS+2*i}, v{SS+2*i+1}')
    for Tt in range(8): a(f'v_mfma_f32_16x16x32_bf16 {vr(O+4*Tt,4)}, {vr(VF+4*Tt,4)}, {vr(BT,4)}, 0')
    a(f'v_add_f32 v{LX}, v{SS}, v{SS+1}')
    for i in range(2, 8): a(f'v_add_f32 v{LX}, v{LX}, v{SS+i}')
    def cond():
        a(f'v_readlane_b32 s35, v{VT0+2}, 0'); a(f'v_readlane_b32 s56, v{VT0+2}, 8'); a('s_min_u32 s35, s35, s56'); a('s_cmp_gt_u32 s35, s46')
    def far():
        a('s_cmp_ge_u32 s35, s46'); a('s_cbranch_scc1 LA_p'); a('s_sleep 24')
    poll_ws(a, VT0, 49, cond, 'LA_p', fail, width=2, sleep=2, far=far)
    lastrt(a, 9)
    a(f's_add_u32 s53, s52, {KVM}'); a('s_add_u32 s55, s53, 4096')
    for f in range(4): a(f'buffer_load_dwordx4 {vr(KM+4*f,4)}, v{L16}, s[12:15], s53 offen offset:{f*1024} sc1')
    for w in range(4): a(f'buffer_load_dwordx2 {vr(VM+2*w,2)}, v{L8}, s[12:15], s55 offen offset:{w*512} sc1')
    a('s_add_u32 s53, s51, s50'); a('s_lshl_b32 s55, s46, 7'); a('s_add_u32 s55, s55, s60')
    a(f'v_mov_b32 v{VT0}, 0'); a(f'v_mov_b32 v{VT0+1}, 1')
    for f in range(4): a(f'v_mfma_f32_16x16x32_bf16 {vr(SM,4)}, {vr(KM+4*f,4)}, {vr(QF+4*f,4)}, {"0" if f == 0 else vr(SM,4)}')
    a(f'v_max_f32 v{M}, v{SM}, v{SM+1}')
    xred('v_max_f32', M)
    a(f'v_mul_f32 v{M}, s54, v{M}'); a(f'v_max_f32 v{M}, v{M}, v{MX}')
    a(f'v_fma_f32 v{SM}, v{SM}, s54, -v{M}'); a(f'v_fma_f32 v{SM+1}, v{SM+1}, s54, -v{M}'); a(f'v_sub_f32 v{AL}, v{MX}, v{M}')
    a(f'v_exp_f32 v{SM}, v{SM}'); a(f'v_exp_f32 v{SM+1}, v{SM+1}'); a(f'v_exp_f32 v{AL}, v{AL}')
    a(f'v_add_f32 v{M}, v{SM}, v{SM+1}'); a(f'v_fma_f32 v{M}, v{LX}, v{AL}, v{M}')
    xred('v_add_f32', M)
    a(f'v_rcp_f32 v{M}, v{M}')
    a(f'v_mul_f32 v{SM}, v{SM}, v{M}'); a(f'v_mul_f32 v{SM+1}, v{SM+1}, v{M}'); a(f'v_mul_f32 v{AL}, v{AL}, v{M}')
    a(f'v_cvt_pk_bf16_f32 v{PM}, v{SM}, v{SM+1}'); a(f'v_cvt_pk_bf16_f32 v{PM+3}, v{SM}, v{SM+1}')
    for r in range(0, 32, 2): a(f'v_pk_mul_f32 {vr(O+r,2)}, {vr(O+r,2)}, {vr(AL,2)} op_sel_hi:[1,0]')
    for Tt in range(8):
        d = vr(O + 4 * Tt, 4)
        a(f'v_mfma_f32_16x16x16_bf16 {d}, {vr(VM+2*(Tt>>1),2)}, {vr(PM+2*(Tt&1),2)}, {d}')
    for f in range(4):
        b = O + 8 * f
        for r in range(4): a(f'v_cvt_pk_bf16_f32 v{b+r}, v{b+r}, v{b+4+r}')
        a(f'buffer_store_dwordx4 {vr(b,4)}, v{L16}, s[12:15], s53 offen offset:{f*1024} sc1')
    lastrt(a, 10)
    a('s_waitcnt vmcnt(0)'); a('s_barrier')
    a('s_mov_b64 exec, 1')
    a(f'buffer_atomic_add v{VT0+1}, v{VT0}, s[12:15], s55 offen')
    a('s_mov_b64 exec, -1')
    a(f's_add_u32 s46, s46, {NWX//2}'); a('s_cmp_lt_u32 s46, 64'); a('s_cbranch_scc1 LA_loop')

def gen_proj_load(a):
    a('s_load_dwordx2 s[20:21], s[0:1], 40'); a('s_load_dwordx2 s[22:23], s[0:1], 80'); a('s_load_dwordx2 s[24:25], s[0:1], 96')
    a(f's_mul_i32 s33, s{SW}, {9*4096}')
    set_vtr(a, 33, 4)
    lane_rows(a, 12, 4, 'r16', 1280)
    a('s_waitcnt lgkmcnt(0)')
    a.srd(36, 20, 5242880); a.srd(40, 22, 2211840); a.srd(16, 24, 2621440)
    a(f's_lshl_b32 s34, s47, 6'); a(f's_mul_i32 s44, s{SW}, {1024*1280}'); a('s_add_u32 s44, s44, s34')
    a(f's_mul_i32 s45, s{SW}, {448*1280}'); a('s_add_u32 s45, s45, s34')
    a('s_barrier')
    units = []
    for n in range(23):
        j = n if n < 7 else n - 7
        loc = wreg(16 + n, 7) if n < 7 else wreg(n - 7, 7)
        units.append((40 if n < 7 else 36, 45 if n < 7 else 44, [(64 * j + 32 * (i >> 1) + 2 * (i & 1)) * 1280 for i in range(4)], 12, loc))
    load_units(a, units, 9, 33, 'pw', toff=8)
    a('s_waitcnt vmcnt(0) lgkmcnt(0)'); a('s_barrier')

def gen_proj(a, fail):
    AA, AB, RING, NR = 16, 24, 32, 28
    GV, VO, VLW = 12, 14, 15
    a(f'v_bfe_u32 v{VT0+6}, v{L16}, 4, 4'); a(f'v_mul_u32_u24 v{VO}, 1280, v{VT0+6}'); a(f'v_lshrrev_b32 v{VT0+7}, 8, v{L16}'); a(f'v_lshl_add_u32 v{VO}, v{VT0+7}, 4, v{VO}')
    a(f'v_lshlrev_b32 v{VXS}, 2, v{VT0+6}')
    a(f's_lshl_b32 s34, s{SW}, 11'); a(f'v_add_u32 v{VLW}, s34, v{L16}')
    a(f's_mul_i32 s48, s{SW}, {14*1024}'); a('s_lshl_b32 s34, s58, 16'); a('s_add_u32 s48, s48, s34'); a(f's_add_u32 s48, s48, {HG}')
    a(f's_lshl_b32 s49, s{SW}, 15'); a('s_lshl_b32 s34, s58, 17'); a('s_add_u32 s49, s49, s34'); a(f's_add_u32 s49, s49, {OG}')
    a('s_mul_i32 s50, s58, 20480'); a('s_lshl_b32 s34, s47, 6'); a('s_add_u32 s50, s50, s34')
    a(f's_lshl_b32 s60, s58, 6'); a(f's_add_u32 s60, s60, {GG}')
    def gemm(nks, base_s, acc, wloc):
        def ld(ks):
            if (ks & 3) == 0: a(f's_add_u32 s56, s{base_s}, {ks*1024}')
            a(f'buffer_load_dwordx4 {vr(RING+4*(ks % NR),4)}, v{L16}, s[12:15], s56 offen offset:{(ks&3)*1024} sc1')
        for n in range(min(NR, nks)): ld(n)
        for ks in range(nks):
            k, b = wloc(ks >> 1)
            for t in range(2):
                c = vr(acc + 4 * t, 4)
                a(f'v_mfma_f32_16x16x32_bf16 {c}, {k}[{b+8*t+4*(ks&1)}:{b+8*t+4*(ks&1)+3}], {vr(RING+4*(ks % NR),4)}, {"0" if ks == 0 else c}')
            if ks + NR < nks: ld(ks + NR)
    a.label('LP_loop')
    a('s_lshl_b32 s51, s46, 17'); a('s_add_u32 s51, s51, s48')
    a('s_lshl_b32 s52, s46, 18'); a('s_add_u32 s52, s52, s49')
    a('s_lshl_b32 s53, s46, 7'); a('s_add_u32 s54, s53, s60'); a(f's_add_u32 s53, s54, {FLG + 32*128 - GG}')
    a(f'buffer_load_dword v{GV}, v{VXS}, s[12:15], s54 offen sc1')
    gemm(14, 51, AB, lambda j: wreg(16 + j, 7))
    a(f'v_sub_f32 v{VT0+6}, 1.0, v{GV}')
    for r in range(8): a(f'v_mul_f32 v{AB+r}, v{AB+r}, v{VT0+6}')
    def cond():
        a(f'v_readfirstlane_b32 s35, v{VT0+2}'); a('s_cmp_ge_u32 s35, 8')
    a(f's_cmp_lg_u32 s{SW}, 0'); a('s_cbranch_scc1 LP_p_ok')
    poll_ws(a, VT0, 53, cond, 'LP_p', fail, sleep=2)
    a('s_barrier')
    lastrt(a, 9)
    gemm(32, 52, AA, lambda j: wreg(j, 7))
    for r in range(8): a(f'v_fma_f32 v{AB+r}, v{AA+r}, v{GV}, v{AB+r}')
    lastrt(a, 10)
    for q in range(2): a(f'ds_write_b128 v{VLW}, {vr(AB+4*q,4)} offset:{q*1024}')
    a('s_waitcnt lgkmcnt(0)'); a('s_barrier')
    a(f's_cmp_ge_u32 s{SW}, 1'); a('s_cbranch_scc1 LP_skip')
    for w in range(4):
        for t in range(2): a(f'ds_read_b128 {vr(RING+8*w+4*t,4)}, v{L16} offset:{w*2048 + t*1024}')
    for r in range(8):
        a(f'v_add_f32 v{RING+r}, v{RING+r}, v{RING+8+r}'); a(f'v_add_f32 v{RING+16+r}, v{RING+16+r}, v{RING+24+r}')
    for r in range(8): a(f'v_add_f32 v{RING+r}, v{RING+r}, v{RING+16+r}')
    for i in range(4): a(f'v_cvt_pk_bf16_f32 v{RING+32+i}, v{RING+2*i}, v{RING+2*i+1}')
    a('s_mul_i32 s34, s46, 40960'); a('s_add_u32 s34, s34, s50')
    a(f'buffer_store_dwordx4 {vr(RING+32,4)}, v{VO}, s[16:19], s34 offen')
    a.label('LP_skip')
    a('s_barrier')
    a(f's_add_u32 s46, s46, {NWX//2}'); a('s_cmp_lt_u32 s46, 64'); a('s_cbranch_scc1 LP_loop')

DELAY = 0
def gen_worker(a, endlab):
    if DELAY:
        a(f's_mov_b32 s34, {DELAY}'); a.label('LW_dl'); a('s_sleep 32'); a('s_sub_u32 s34, s34, 1'); a('s_cmp_lg_u32 s34, 0'); a('s_cbranch_scc1 LW_dl')
    gen_phase1(a)
    a(f's_lshr_b32 s46, s{SU}, 5'); a(f's_and_b32 s47, s{SU}, 31')
    a('s_cmp_ge_u32 s47, 28'); a(f's_cbranch_scc1 {endlab}')
    a('s_cmp_ge_u32 s47, 20'); a('s_cbranch_scc1 LW_attn')
    gen_proj_load(a)
    rt(a)
    wait_dbg(a, D_P1B, NWG, 'LW_w1', endlab)
    rt(a)
    a('s_and_b32 s58, s46, 1'); a('s_lshr_b32 s46, s46, 1')
    gen_proj(a, endlab)
    rt(a)
    a(f's_branch {endlab}')
    a.label('LW_attn')
    a('s_sub_u32 s47, s47, 20'); a('s_lshl_b32 s47, s47, 2'); a(f's_add_u32 s47, s47, s{SW}')
    wait_dbg(a, D_P1B, NWG, 'LW_w2', endlab)
    rt(a)
    a('s_and_b32 s58, s46, 1'); a('s_lshr_b32 s46, s46, 1')
    gen_attn(a, endlab)
    rt(a)
```

```python
import sys
from al import *
from layout import *
import worker as W
import importlib
C = importlib.import_module(sys.argv[2])
opts = sys.argv[3:]
W.RT = 'dbg' if 'rtdbg' in opts else 'rt' in opts
for o in opts:
    if o.startswith('wdelay='): W.DELAY = int(o[7:])
W.PREF = 'pref' in opts
a = Asm()
a('s_load_dwordx2 s[4:5], s[0:1], 104'); a('s_load_dwordx2 s[6:7], s[0:1], 112')
a('s_cmp_ge_u32 s2, 256'); a('s_cbranch_scc1 LC_end')
a('s_waitcnt lgkmcnt(0)')
a.srd(8, 4, 256); a.srd(12, 6, 0x10000000)
a('s_lshr_b32 s30, s2, 3')
def resolve(a, lab):
    a('v_mov_b32 v15, 15360')
    a('v_cmp_gt_u32 vcc, 64, v94'); a(f's_cbranch_vccz {lab}')
    a('ds_write_b32 v15, v14')
    a.label(lab)
    a('s_waitcnt lgkmcnt(0)'); a('s_barrier')
    a('ds_read_b32 v14, v15')
    a('v_readfirstlane_b32 s34, v14'); a('s_bitcmp1_b32 s34, s30')
W.resolve = resolve
a('s_mov_b32 s101, 0'); a('v_mov_b32 v94, v0'); a('v_mov_b32 v14, 0')
a('s_and_b32 s35, s2, 7'); a('s_mov_b32 s3, 0')
a('s_cmp_eq_u32 s35, 1'); a('s_cbranch_scc1 L_chain')
a('s_cmp_ge_u32 s35, 3'); a('s_cbranch_scc1 L_w0')
a('s_getreg_b32 s34, hwreg(HW_REG_XCC_ID)'); a('s_lshr_b32 s36, s35, 1'); a('s_xor_b32 s34, s34, s36'); a('s_and_b32 s36, s34, 1')
if 'flipw' in opts: a('s_xor_b32 s36, s36, 1')
a('s_lshl_b32 s34, s36, 2'); a(f's_add_u32 s34, s34, {D_CLC}'); a('s_lshl_b32 s37, 1, s30')
a('v_lshlrev_b32 v15, 12, v0'); a('v_mov_b32 v14, s37')
a('s_mov_b64 exec, 1')
a('buffer_atomic_or v14, v15, s[8:11], s34 offen sc0')
a('s_mov_b64 exec, -1')
a('s_mov_b32 s3, 1'); a('s_mov_b32 s101, 1')
a('s_cmp_eq_u32 s36, 0'); a('s_cbranch_scc1 L_chain')
a('v_readfirstlane_b32 s34, v14'); a('v_mov_b32 v14, s34')
resolve(a, 'L_rs1')
a('s_mov_b32 s101, 0')
a('s_cbranch_scc1 L_chain')
a.label('L_wlost')
a('s_mov_b32 s35, 2'); a('v_mov_b32 v0, v94')
a.label('L_w0')
a('s_sub_u32 s35, s35, 2'); a('s_lshl_b32 s35, s35, 5'); a('s_add_u32 s30, s30, s35')
W.gen_worker(a, 'L_wend')
a.label('L_wend')
a('s_endpgm')
a.label('L_chain')
if 'hrot' in opts: a('s_add_u32 s30, s30, 1'); a('s_and_b32 s30, s30, 31')
C.gen_chain(a, stamps=('stamps' in opts), exp=opts, full=True)
k = NAME + '_kernel'
open(sys.argv[1], 'w').write(kernel_wrap([(k, a.text(), 512, 256, 102)], [(k, (256,1,1), (256,1,1), 163840)]))
DOC = """; ---------------------------------------------------------------------------------------------------------
;  * 64 "chain" workgroups (id%8 == 1 plus one of id%8 in {0,2}, settled by an atomic claim) run the 64-step memory recurrence: one head per workgroup, Wq/Wk/Wv and half of
;    Per step: q,k,v -> scores -> softmax (true max) -> PV -> Wo partial -> reduce-scatter -> all-gather.
;  * every spin loop is bounded; short s_nop / s_sleep runs are poll back-off only.
; ---------------------------------------------------------------------------------------------------------
"""
t = open(sys.argv[1]).read().replace('.amdgcn_target', DOC + '.amdgcn_target', 1)
open(sys.argv[1], 'w').write(t)
import align
align.align(sys.argv[1], 'LF_step', 'LF_nored')
```

```python
from al import *
from layout import *
import math, struct
def f2u(x): return struct.unpack('<I', struct.pack('<f', x))[0]
def vr(b, n): return f'v[{b}:{b+n-1}]'
LOG2E = math.log2(math.e)
SCL = (128 ** -0.5) * LOG2E
DPPM = 'row_mask:0xf bank_mask:0xf'
SW = 31
SU = 30
L16, VTR, VXS, VXR, VT0 = 0, 1, 2, 3, 4

def wreg(i, nv):
    return ('a', 16 * i) if i < 16 else ('v', 256 - 16 * nv + 16 * (i - 16))

def load_units(a, units, nslots, ringbase_s, tag, toff=32):
    def dma(n):
        srd, sb, imms, vo, _ = units[n]
        for i in range(4):
            a(f's_add_u32 s34, s{sb}, {imms[i]}')
            a(f's_add_u32 m0, s{ringbase_s}, {(n % nslots) * 4096 + i * 1024}')
            a(f'buffer_load_dwordx4 v{vo}, s[{srd}:{srd+3}], s34 offen lds', tok=f'{tag}d{n}')
    for n in range(min(nslots, len(units))): dma(n)
    for n, u in enumerate(units):
        a.wait_tok(f'{tag}d{n}')
        k, b = u[4]
        for t in range(2):
            for rp in range(4):
                a(f'ds_read_b64_tr_b16 {k}[{b+8*t+2*rp}:{b+8*t+2*rp+1}], v{VTR} offset:{(n % nslots)*4096 + rp*1024 + t*toff}', tok=f'{tag}t{n}')
        if n + nslots < len(units):
            a.wait_tok(f'{tag}t{n}')
            dma(n + nslots)

def load_units_coop(a, units, nslots, base, wstride, stride, tag, TR=96, VS=104):
    t = VT0
    a(f'v_lshrrev_b32 v{t}, 8, v{L16}'); a(f'v_bfe_u32 v{t+1}, v{L16}, 4, 4')
    a(f'v_lshlrev_b32 v{t+2}, 1, v{t}'); a(f'v_xor_b32 v{t+2}, v{t+2}, v{t+1}'); a(f'v_xor_b32 v{t+3}, 8, v{t+2}')
    a(f'v_mul_u32_u24 v{t}, {stride}, v{t}')
    a(f'v_lshl_add_u32 v{VS}, v{t+2}, 4, v{t}'); a(f'v_lshl_add_u32 v{VS+1}, v{t+3}, 4, v{t}')
    def dma(n):
        srd, sb, row0, _ = units[n]
        for g in range(4):
            a(f's_add_u32 s34, s{sb}, {(row0 + 8 * g) * stride}')
            a(f's_add_u32 m0, s33, {(n % nslots) * 4096 + g * 1024}')
            a(f'buffer_load_dwordx4 v{VS + (g & 1)}, s[{srd}:{srd+3}], s34 offen lds', tok=f'{tag}d{n}')
    dep = nslots - 1
    for n in range(dep): dma(n)
    a(f'v_lshrrev_b32 v{t}, 6, v{L16}'); a(f'v_and_b32 v{t+1}, 7, v{t}'); a(f'v_lshlrev_b32 v{t+1}, 1, v{t+1}')
    a(f'v_bfe_u32 v{t+2}, v{L16}, 4, 1'); a(f'v_lshlrev_b32 v{t+2}, 3, v{t+2}'); a(f'v_lshl_add_u32 v{t+2}, v{t}, 8, v{t+2}')
    a(f's_lshl_b32 s34, s{SW}, 2'); a(f'v_bfe_u32 v{t+3}, v{L16}, 5, 1'); a(f'v_add_u32 v{t+3}, s34, v{t+3}')
    for tt in range(2):
        a(f'v_add_u32 v{t+4}, {2*tt}, v{t+3}'); a(f'v_xor_b32 v{t+4}, v{t+4}, v{t+1}'); a(f'v_lshl_add_u32 v{t+4}, v{t+4}, 4, v{t+2}')
        for rp in range(4): a(f'v_add_u32 v{TR+4*tt+rp}, {base + rp*wstride}, v{t+4}')
    for n, u in enumerate(units):
        a.wait_tok(f'{tag}d{n}')
        a('s_waitcnt lgkmcnt(0)'); a('s_barrier')
        if n + dep < len(units): dma(n + dep)
        k, b = u[3]
        for tt in range(2):
            for rp in range(4):
                a(f'ds_read_b64_tr_b16 {k}[{b+8*tt+2*rp}:{b+8*tt+2*rp+1}], v{TR+4*tt+rp} offset:{(n % nslots)*4096}')

def worker_setup(a):
    a('v_lshrrev_b32 v16, 6, v0'); a(f'v_readfirstlane_b32 s{SW}, v16')
    a('v_and_b32 v17, 63, v0')
    a(f'v_lshlrev_b32 v{L16}, 4, v17')
    a('v_lshrrev_b32 v18, 4, v17'); a('v_lshlrev_b32 v18, 1, v18'); a('v_mov_b32 v19, 0x78'); a('v_lshrrev_b32 v19, v18, v19'); a('v_xor_b32 v19, v19, v17'); a('v_and_b32 v19, 3, v19')
    a('v_lshrrev_b32 v20, 2, v17'); a(f'v_mul_u32_u24 v{VXS}, 1280, v20'); a(f'v_lshl_add_u32 v{VXS}, v19, 4, v{VXS}')
    a('v_bfe_u32 v18, v17, 2, 2'); a('v_lshlrev_b32 v18, 1, v18'); a('v_mov_b32 v19, 0x78'); a('v_lshrrev_b32 v19, v18, v19'); a('v_lshrrev_b32 v21, 4, v17'); a('v_xor_b32 v19, v19, v21'); a('v_and_b32 v19, 3, v19')
    a('v_and_b32 v20, 15, v17'); a(f'v_lshlrev_b32 v{VXR}, 6, v20'); a(f'v_lshl_add_u32 v{VXR}, v19, 4, v{VXR}')

def set_vtr(a, ring_s, sh=3):
    a(f'v_lshrrev_b32 v{VT0}, 6, v{L16}'); a(f'v_lshlrev_b32 v{VT0}, 6, v{VT0}'); a(f'v_bfe_u32 v{VT0+1}, v{L16}, 4, 2')
    a(f'v_lshl_add_u32 v{VTR}, v{VT0+1}, {sh}, v{VT0}'); a(f'v_add_u32 v{VTR}, s{ring_s}, v{VTR}')

def lane_rows(a, dst, gmul, rfun, stride):
    t = VT0
    a(f'v_lshrrev_b32 v{t}, 8, v{L16}'); a(f'v_mul_u32_u24 v{t}, {gmul}, v{t}')
    a(f'v_bfe_u32 v{t+1}, v{L16}, 6, 2')
    if rfun == 'r': a(f'v_add_u32 v{t}, v{t}, v{t+1}')
    else:
        a(f'v_lshrrev_b32 v{t+2}, 1, v{t+1}'); a(f'v_add_u32 v{t}, v{t}, v{t+2}'); a(f'v_and_b32 v{t+1}, 1, v{t+1}'); a(f'v_lshl_add_u32 v{t}, v{t+1}, 4, v{t}')
    a(f's_mov_b32 s34, {stride}'); a(f'v_mul_lo_u32 v{t}, v{t}, s34'); a(f'v_bfe_u32 v{t+1}, v{L16}, 4, 2'); a(f'v_lshl_add_u32 v{dst}, v{t+1}, 4, v{t}')

XB = 40960
PREF = False
NROUND = -(-64 // NWX)
RT = True
RTOFF = FLG + 0x200000
def rt(a, t=VT0+6):
    if RT == 'dbg':
        a('s_memrealtime s[72:73]'); a('s_waitcnt lgkmcnt(0)')
        a(f'v_mov_b32 v{t}, s75'); a(f'v_mov_b32 v{t+1}, s72'); a('s_add_u32 s75, s75, 4')
        a(f's_cmp_eq_u32 s{SW}, 0'); a('s_cselect_b32 s74, 0, 0x40000000')
        a('s_mov_b64 exec, 1')
        a(f'buffer_atomic_umax v{t+1}, v{t}, s[8:11], s74 offen')
        a('s_mov_b64 exec, -1')
        return
    if not RT: return
    a('s_memrealtime s[72:73]'); a('s_waitcnt lgkmcnt(0)')
    a(f's_lshl_b32 s74, s2, 2'); a(f's_add_u32 s74, s74, s{SW}'); a('s_lshl_b32 s74, s74, 7'); a(f's_add_u32 s74, s74, {RTOFF}')
    a('s_add_u32 s74, s74, s75'); a('s_add_u32 s75, s75, 4')
    a(f'v_mov_b32 v{t}, 0'); a(f'v_mov_b32 v{t+1}, s72')
    a(f'buffer_store_dword v{t+1}, v{t}, s[12:15], s74 offen')
def gen_gemm1(a, kind, P):
    stride = 3456 if kind == 'h' else 8192
    ostride = {'kq': 262144, 'v': 262144, 'h': 131072}[kind]
    WO = 12
    XA = 13
    ACC = 16
    XF = 48
    OUT = 80
    a(f's_mul_i32 s33, s{SW}, {7*4096}'); a(f's_add_u32 s33, s33, {XB}')
    a(f's_lshr_b32 s34, s{SW}, 1'); a('s_lshl_b32 s34, s34, 5'); a(f's_and_b32 s35, s{SW}, 1'); a('s_lshl_b32 s35, s35, 2'); a('s_add_u32 s34, s34, s35'); a(f's_mul_i32 s34, s34, {stride}')
    a('s_add_u32 s76, s44, s34'); a('s_add_u32 s77, s45, s34')
    a(f's_mul_i32 s50, s{SW}, 10240')
    a(f's_mul_i32 s51, s{SW}, 320')
    def xdma(n, buf_s, tile_s, tok):
        return [f's_add_u32 s34, s{tile_s}, {(n >> 1) * 64 + (n & 1) * 20480}', f's_add_u32 m0, s{buf_s}, {n * 1024}',
                (f'buffer_load_dwordx4 v{VXS}, s[16:19], s34 offen lds', tok)]
    def emit(p):
        if isinstance(p, tuple): a(p[0], tok=p[1])
        else: a(p)
    a(f's_mul_i32 s52, s46, 40960'); a('s_add_u32 s52, s52, s51'); a('s_mul_i32 s54, s47, 40960'); a('s_mov_b32 s53, s50')
    a('s_barrier')
    for n in range(10):
        for p in xdma(n, 53, 52, f'{P}x'): emit(p)
    units = [(36 + 4 * pr, 76 + pr, 64 * j, wreg(2 * j + pr, 4)) for j in range(10) for pr in range(2)]
    load_units_coop(a, units, 7, XB, 7 * 4096, stride, P + 'w')
    a('s_waitcnt vmcnt(0) lgkmcnt(0)'); a('s_barrier')
    rt(a)
    a('s_add_u32 s52, s52, s54'); a(f's_add_u32 s53, s50, {XB}')
    for n in range(10):
        for p in xdma(n, 53, 52, f'{P}x1'): emit(p)
    a('s_add_u32 s52, s52, s54'); a(f's_add_u32 s53, s50, {2*XB}')
    a(f's_mov_b32 s55, 0')
    a(f's_mul_i32 s56, s46, {ostride}'); a('s_add_u32 s56, s56, s48'); a(f's_mul_i32 s57, s47, {ostride}')
    a.label(f'{P}_tile')
    a(f'v_add_u32 v{XA}, s55, v{VXR}')
    side = []
    for n in range(10): side += [xdma(n, 53, 52, f'{P}xn')]
    def rdx(ks):
        for mt in range(2): a(f'ds_read_b128 {vr(XF + 8*(ks % 4) + 4*mt, 4)}, v{XA} offset:{(2*ks+mt)*1024}')
    rdx(0); rdx(1); rdx(2)
    for ks in range(20):
        j, kh = ks >> 1, ks & 1
        n = 0
        for pr in range(2):
            k, b = wreg(2 * j + pr, 4)
            for t in range(2):
                Wf = f'{k}[{b+8*t+4*kh}:{b+8*t+4*kh+3}]'
                for mt in range(2):
                    c = vr(ACC + 16 * mt + 8 * pr + 4 * t, 4); Xf = vr(XF + 8 * (ks % 4) + 4 * mt, 4)
                    A_, B_ = (Xf, Wf) if kind == 'v' else (Wf, Xf)
                    a(f'v_mfma_f32_16x16x32_bf16 {c}, {A_}, {B_}, {"0" if ks == 0 else c}')
                    n += 1
                    if n == 1 and ks + 3 < 20: rdx(ks + 3)
                    if n == 4 and side and ks >= 1:
                        for p in side.pop(0): emit(p)
    if kind == 'kq':
        for mt in range(2):
            for pr in range(2):
                o = OUT + 8 * mt + 4 * pr; b = ACC + 16 * mt + 8 * pr
                for r in range(4): a(f'v_cvt_pk_bf16_f32 v{o+r}, v{b+r}, v{b+4+r}')
                a(f's_add_u32 s35, s56, {pr*8192 + mt*4096}')
                a(f'buffer_store_dwordx4 {vr(o,4)}, v{L16}, s[12:15], s35 offen sc1')
    elif kind == 'v':
        for T in range(4):
            o = OUT + 4 * T
            for mt in range(2):
                b = ACC + 16 * mt + 4 * T
                a(f'v_cvt_pk_bf16_f32 v{o+2*mt}, v{b}, v{b+1}'); a(f'v_cvt_pk_bf16_f32 v{o+2*mt+1}, v{b+2}, v{b+3}')
            if T == 2: a('s_add_u32 s35, s56, 8192')
            a(f'buffer_store_dwordx4 {vr(o,4)}, v{L16}, s[12:15], s{35 if T >= 2 else 56} offen offset:{(T&1)*1024} sc1')
    else:
        a(f's_mov_b32 s35, {f2u(-LOG2E):#x}')
        for mt in range(2):
            G = ACC + 16 * mt; U = G + 8; E = OUT + 8
            for r in range(8): a(f'v_mul_f32 v{E+r}, s35, v{G+r}')
            for r in range(8): a(f'v_exp_f32 v{E+r}, v{E+r}')
            for r in range(8): a(f'v_mul_f32 v{G+r}, v{G+r}, v{U+r}')
            for r in range(8): a(f'v_add_f32 v{E+r}, 1.0, v{E+r}')
            for r in range(8): a(f'v_rcp_f32 v{E+r}, v{E+r}')
            for r in range(8): a(f'v_mul_f32 v{G+r}, v{G+r}, v{E+r}')
            o = OUT + 4 * mt
            for r in range(4): a(f'v_cvt_pk_bf16_f32 v{o+r}, v{G+r}, v{G+4+r}')
            if mt == 1: a('s_add_u32 s58, s56, 65536')
            a(f'buffer_store_dwordx4 {vr(o,4)}, v{L16}, s[12:15], s{58 if mt else 56} offen sc1')
    nst = 2 if kind == 'h' else 4
    a('s_add_u32 s46, s46, s47'); a('s_add_u32 s52, s52, s54'); a('s_add_u32 s56, s56, s57')
    a(f's_add_u32 s53, s55, s50')
    a(f's_add_u32 s55, s55, {XB}'); a(f's_cmp_eq_u32 s55, {3*XB}'); a('s_cselect_b32 s55, 0, s55')
    a(f's_waitcnt vmcnt({10 + nst})')
    if kind != 'h':
        a('s_cmp_lg_u32 s59, 0'); a(f's_cbranch_scc1 {P}_nw'); a('s_waitcnt vmcnt(0)'); a.label(f'{P}_nw')
    a('s_barrier')
    if kind != 'h':
        a('s_add_u32 s59, s59, 1')
        a(f's_cmp_lg_u32 s{SW}, 0'); a(f's_cbranch_scc1 {P}_nosig')
        a('s_cmp_eq_u32 s59, 1'); a(f's_cselect_b32 s35, {D_KVR}, 0')
        a(f's_cmp_eq_u32 s59, {KVROUNDS[1]+1}'); a(f's_cselect_b32 s35, {D_KVR+4}, s35')
        a('s_cmp_eq_u32 s35, 0'); a(f's_cbranch_scc1 {P}_nosig')
        a(f'v_mov_b32 v{VT0}, s35'); a(f'v_mov_b32 v{VT0+1}, 1')
        a('s_mov_b64 exec, 1')
        a(f'buffer_atomic_add v{VT0+1}, v{VT0}, s[8:11], 0 offen')
        a('s_mov_b64 exec, -1')
        a.label(f'{P}_nosig')
    a('s_cmp_lt_u32 s46, 64'); a(f's_cbranch_scc1 {P}_tile')
    a('s_waitcnt vmcnt(0)')

def signal(a, off):
    lab = a.newlabel('LSG')
    a('s_barrier')
    a(f's_cmp_lg_u32 s{SW}, 0'); a(f's_cbranch_scc1 {lab}')
    a(f'v_mov_b32 v{VT0}, {off}'); a(f'v_mov_b32 v{VT0+1}, 1')
    a('s_mov_b64 exec, 1')
    a(f'buffer_atomic_add v{VT0+1}, v{VT0}, s[8:11], 0 offen')
    a('s_mov_b64 exec, -1')
    a.label(lab)

def wait_dbg(a, off, target, lab, fail, t=VT0):
    a(f's_cmp_lg_u32 s{SW}, 0'); a(f's_cbranch_scc1 {lab}_ok')
    a(f'v_mov_b32 v{t}, {off}'); a('s_mov_b32 s34, 0')
    a.label(lab)
    a(f'buffer_load_dword v{t+1}, v{t}, s[8:11], 0 offen sc1')
    a('s_add_u32 s34, s34, 1'); a('s_cmp_gt_u32 s34, 2000000'); a(f's_cbranch_scc1 {fail}')
    a(f'v_readfirstlane_b32 s35, v{t+1}'); a(f's_cmp_ge_u32 s35, {target}'); a(f's_cbranch_scc1 {lab}_ok')
    a('s_sleep 16'); a(f's_branch {lab}')
    a.label(lab + '_ok')
    a('s_barrier')

def kv_wait(a, need_s, ready_s, lab, fail, t, l16):
    a(f'v_lshrrev_b32 v{t}, 2, v{l16}'); a(f'v_min_u32 v{t}, 12, v{t}'); a('s_mov_b32 s34, 0')
    a.label(lab)
    a(f'buffer_load_dword v{t+1}, v{t}, s[8:11], 0 offen offset:{D_KVR} sc1')
    a('s_add_u32 s34, s34, 1'); a('s_cmp_gt_u32 s34, 2000000'); a(f's_cbranch_scc1 {fail}')
    a(f'v_cmp_gt_u32 vcc, {NWG}, v{t+1}')
    a('s_ff1_i32_b64 s35, vcc'); a('s_lshl_b32 s35, s35, 3'); a(f's_lshr_b32 s{ready_s}, {(64 << 24) | (KVROUNDS[1]*NWX << 16) | (KVROUNDS[0]*NWX << 8):#x}, s35'); a(f's_and_b32 s{ready_s}, s{ready_s}, 255')
    a(f's_cmp_gt_u32 s{ready_s}, s{need_s}'); a(f's_cbranch_scc1 {lab}_ok')
    a('s_sleep 8'); a(f's_branch {lab}')
    a.label(lab + '_ok')

def gen_gate(a, nwaves):
    GW, XF, D = 16, 96, 176
    a(f'v_lshrrev_b32 v{VT0}, 8, v{L16}'); a(f'v_lshlrev_b32 v{VT0}, 4, v{VT0}')
    for ks in range(20): a(f'buffer_load_dwordx4 {vr(GW+4*ks,4)}, v{VT0}, s[36:39], 0 offen offset:{64*ks}')
    a(f'v_bfe_u32 v{VT0+1}, v{L16}, 4, 4'); a(f'v_mul_u32_u24 v{VT0+2}, 1280, v{VT0+1}'); a(f'v_add_u32 v{VT0+2}, v{VT0+2}, v{VT0}')
    a(f'v_lshlrev_b32 v{VT0+3}, 2, v{VT0+1}')
    a(f's_mov_b32 s35, {f2u(-LOG2E):#x}')
    a.label('LG_loop')
    a('s_mul_i32 s50, s46, 20480'); a('s_lshl_b32 s51, s46, 6'); a(f's_add_u32 s51, s51, {GG}')
    for ks in range(20): a(f'buffer_load_dwordx4 {vr(XF+4*ks,4)}, v{VT0+2}, s[16:19], s50 offen offset:{64*ks}')
    for ks in range(20): a(f'v_mfma_f32_16x16x32_bf16 {vr(D,4)}, {vr(GW+4*ks,4)}, {vr(XF+4*ks,4)}, {"0" if ks == 0 else vr(D,4)}')
    a(f'v_mul_f32 v{D}, s35, v{D}'); a(f'v_exp_f32 v{D}, v{D}'); a(f'v_add_f32 v{D}, 1.0, v{D}'); a(f'v_rcp_f32 v{D}, v{D}')
    a('s_mov_b64 exec, 0xffff')
    a(f'buffer_store_dword v{D}, v{VT0+3}, s[12:15], s51 offen sc1')
    a('s_mov_b64 exec, -1')
    a(f's_add_u32 s46, s46, {nwaves}'); a('s_cmp_lt_u32 s46, 128'); a('s_cbranch_scc1 LG_loop')
    a('s_waitcnt vmcnt(0)')

def gen_phase1(a):
    a('s_load_dwordx2 s[20:21], s[0:1], 0')
    a('s_load_dwordx4 s[24:27], s[0:1], 24')
    a('s_load_dwordx2 s[22:23], s[0:1], 16')
    a('s_load_dwordx4 s[60:63], s[0:1], 64')
    a('s_load_dwordx2 s[64:65], s[0:1], 88')
    a('s_load_dwordx2 s[28:29], s[0:1], 40')
    worker_setup(a)
    a('s_mov_b32 s75, 16' if RT == 'dbg' else 's_mov_b32 s75, 0'); rt(a)
    a(f'v_mov_b32 v{VT0}, 0'); a(f'v_lshrrev_b32 v{VT0+1}, 2, v{L16}')
    a(f's_lshl_b32 s34, s{SU}, 7'); a(f's_add_u32 s34, s34, {FLG}')
    a('s_mov_b64 exec, 0xffffffff')
    a(f'buffer_store_dword v{VT0}, v{VT0+1}, s[12:15], s34 offen sc1')
    a('s_mov_b64 exec, -1')
    a('s_waitcnt lgkmcnt(0)')
    a.srd(16, 20, 2621440)
    if PREF:
        per = 5242880 // (NWG * 4)
        a.srd(36, 22, 5242880); a.srd(40, 28, 5242880)
        a(f's_lshl_b32 s34, s{SU}, 2'); a(f's_add_u32 s34, s34, s{SW}'); a(f's_mul_i32 s34, s34, {per}'); a('s_and_b32 s34, s34, 0xffffff80'); a('s_add_u32 s35, s34, 4096')
        for srd in (36, 40):
            for i in range(7): a(f'buffer_load_dwordx4 v[{96+4*i}:{99+4*i}], v{L16}, s[{srd}:{srd+3}], s{34 if i < 4 else 35} offen offset:{(i%4)*1024} nt')
    a(f's_mul_i32 s66, s{SU}, {65536 // NWX + 1}'); a('s_lshr_b32 s66, s66, 16'); a(f's_mul_i32 s34, s66, {NWX}'); a(f's_sub_u32 s67, s{SU}, s34')
    a('s_mov_b32 s46, s67'); a(f's_mov_b32 s47, {NWX}')
    a('s_and_b32 s68, s66, 15'); a('s_lshl_b32 s44, s68, 9'); a('s_add_u32 s45, s44, 256')
    a('s_lshl_b32 s69, s68, 14')
    a(f's_mov_b32 s70, s{SW}'); a('s_mov_b32 s59, 0')
    a('s_cmp_ge_u32 s66, 16'); a('s_cbranch_scc1 LW_v')
    a.srd(36, 24, 5242880); a.srd(40, 24, 5242880)
    a('s_lshl_b32 s48, s70, 10'); a('s_add_u32 s48, s48, s69'); a(f's_add_u32 s48, s48, {KXG}')
    a('s_mov_b32 s71, 0')
    a.label('LW_kq')
    gen_gemm1(a, 'kq', 'LK')
    a('s_cmp_eq_u32 s71, 1'); a('s_cbranch_scc1 LW_p1b_done')
    a('s_branch LW_p1a_done')
    a.label('LW_v')
    a.srd(36, 26, 5242880); a.srd(40, 26, 5242880)
    a('s_lshl_b32 s48, s70, 11'); a('s_add_u32 s48, s48, s69'); a(f's_add_u32 s48, s48, {VXG}')
    gen_gemm1(a, 'v', 'LV')
    a.label('LW_p1a_done')
    signal(a, D_KVR + 8)
    rt(a)
    a('s_mov_b32 s46, s67'); a(f's_mov_b32 s47, {NWX}')
    a('s_cmp_ge_u32 s66, 16'); a('s_cbranch_scc1 LW_h')
    a.srd(36, 22, 5242880); a.srd(40, 22, 5242880)
    a('s_lshl_b32 s48, s70, 10'); a('s_add_u32 s48, s48, s69'); a(f's_add_u32 s48, s48, {QXG}')
    a('s_mov_b32 s71, 1')
    a('s_branch LW_kq')
    a.label('LW_h')
    a('s_cmp_ge_u32 s66, 30'); a('s_cbranch_scc1 LW_gate')
    a.srd(36, 60, 2211840); a.srd(40, 62, 2211840)
    a('s_lshl_b32 s34, s68, 2'); a(f's_add_u32 s34, s34, s{SW}')
    a('s_lshl_b32 s44, s68, 8'); a('s_mov_b32 s45, s44')
    a('s_lshl_b32 s48, s34, 10'); a(f's_add_u32 s48, s48, {HG}')
    gen_gemm1(a, 'h', 'LH')
    a('s_branch LW_p1b_done')
    a.label('LW_gate')
    a.srd(36, 64, 1280)
    a(f's_sub_u32 s46, s{SU}, {30*NWX}'); a('s_lshl_b32 s46, s46, 2'); a(f's_add_u32 s46, s46, s{SW}')
    gen_gate(a, 8 * NWX)
    a.label('LW_p1b_done')
    signal(a, D_P1B)
    rt(a)


def lastrt(a, slot):
    if RT is not True: return
    a('s_mov_b32 s76, s75' if False else f's_mov_b32 s71, s75'); a(f's_mov_b32 s75, {4*slot}'); rt(a); a('s_mov_b32 s75, s71')

def poll_ws(a, t, soff, cond_fn, lab, fail, width=1, sleep=4, far=None):
    a(f'v_and_b32 v{t}, {0 if width == 1 else 128}, v{L16}'); a('s_mov_b32 s34, 0')
    a.label(lab)
    if width <= 2: a(f'buffer_load_dword v{t+2}, v{t}, s[12:15], s{soff} offen sc1')
    else: a(f'buffer_load_dwordx4 {vr(t+2,4)}, v{t}, s[12:15], s{soff} offen sc1')
    a('s_add_u32 s34, s34, 1'); a('s_cmp_gt_u32 s34, 4000000'); a(f's_cbranch_scc1 {fail}')
    cond_fn()
    a(f's_cbranch_scc1 {lab}_ok')
    a(f's_sleep {sleep}')
    if far: far()
    a(f's_branch {lab}')
    a.label(lab + '_ok')

def gen_attn(a, fail):
    QF, KF, VF, KM, VM, SS, O, T = 16, 32, 64, 96, 112, 120, 136, 168
    SA, SB, SM = SS, SS + 4, SS + 8
    a(f's_mov_b32 s54, {f2u(SCL):#x}')
    a(f'v_bfe_u32 v{T}, v{L16}, 4, 4'); a('s_lshl_b32 s34, s58, 4'); a(f'v_add_u32 v{T}, s34, v{T}')
    a(f'v_lshrrev_b32 v{T+1}, 8, v{L16}'); a(f'v_lshlrev_b32 v{T+1}, 2, v{T+1}')
    for i in range(8):
        a(f'v_add_u32 v{T+2}, {16*(i>>2) + (i&3)}, v{T+1}'); a(f'v_cmp_le_u32 s[{76+2*i}:{77+2*i}], v{T+2}, v{T}')
    a(f'v_mov_b32 v{VT0+8}, 0xff800000'); a(f'v_lshrrev_b32 v{VT0+9}, 1, v{L16}')
    NEG, L8 = VT0 + 8, VT0 + 9
    a('s_lshl_b32 s48, s47, 13'); a('s_lshl_b32 s49, s47, 8'); a(f's_add_u32 s49, s49, {FLG + 128*128}')
    a('s_lshl_b32 s50, s47, 12'); a('s_lshl_b32 s34, s58, 17'); a('s_add_u32 s50, s50, s34'); a(f's_add_u32 s50, s50, {OG}')
    a('s_lshl_b32 s57, s58, 12'); a(f's_add_u32 s57, s57, {QXG}')
    a('s_lshl_b32 s60, s58, 6'); a(f's_add_u32 s60, s60, {FLG + 32*128}')
    a(f's_cmp_eq_u32 s{SW}, 0'); a('s_cselect_b32 s60, s60, 0x40000000')
    MX, M, M2, LX, AL = T, T + 1, T + 2, T + 3, T + 4
    BT, PM = T + 8, T + 12
    def xred(op, m):
        for sw in ('v_permlane16_swap_b32', 'v_permlane32_swap_b32'):
            a(f'v_mov_b32 v{M2}, v{m}'); a(f'{sw} v{m}, v{M2}'); a(f'{op} v{m}, v{m}, v{M2}')
    a(f'v_mov_b32 v{PM+1}, 0'); a(f'v_mov_b32 v{PM+2}, 0')
    a.label('LA_loop')
    a('s_lshl_b32 s51, s46, 18'); a('s_add_u32 s52, s51, s48')
    a('s_add_u32 s53, s52, s57')
    for i in range(4): a(f'buffer_load_dwordx4 {vr(QF+4*i,4)}, v{L16}, s[12:15], s53 offen offset:{i*1024} sc1')
    for base, off in ((KF, KXG), (VF, VXG)):
        a(f's_add_u32 s53, s52, {off}'); a(f's_add_u32 s55, s53, 4096')
        for i in range(8): a(f'buffer_load_dwordx4 {vr(base+4*i,4)}, v{L16}, s[12:15], s{53 if i < 4 else 55} offen offset:{(i&3)*1024} sc1')
    for kt in range(2):
        for f in range(4): a(f'v_mfma_f32_16x16x32_bf16 {vr(SS+4*kt,4)}, {vr(KF+16*kt+4*f,4)}, {vr(QF+4*f,4)}, {"0" if f == 0 else vr(SS+4*kt,4)}')
    for i in range(8): a(f'v_cndmask_b32 v{SS+i}, v{NEG}, v{SS+i}, s[{76+2*i}:{77+2*i}]')
    a(f'v_max3_f32 v{MX}, v{SS}, v{SS+1}, v{SS+2}'); a(f'v_max3_f32 v{MX}, v{MX}, v{SS+3}, v{SS+4}'); a(f'v_max3_f32 v{MX}, v{MX}, v{SS+5}, v{SS+6}'); a(f'v_max_f32 v{MX}, v{MX}, v{SS+7}')
    xred('v_max_f32', MX)
    a(f'v_mul_f32 v{MX}, s54, v{MX}')
    for i in range(8): a(f'v_fma_f32 v{SS+i}, v{SS+i}, s54, -v{MX}')
    for i in range(8): a(f'v_exp_f32 v{SS+i}, v{SS+i}')
    for i in range(4): a(f'v_cvt_pk_bf16_f32 v{BT+i}, v{SS+2*i}, v{SS+2*i+1}')
    for Tt in range(8): a(f'v_mfma_f32_16x16x32_bf16 {vr(O+4*Tt,4)}, {vr(VF+4*Tt,4)}, {vr(BT,4)}, 0')
    a(f'v_add_f32 v{LX}, v{SS}, v{SS+1}')
    for i in range(2, 8): a(f'v_add_f32 v{LX}, v{LX}, v{SS+i}')
    def cond():
        a(f'v_readlane_b32 s35, v{VT0+2}, 0'); a(f'v_readlane_b32 s56, v{VT0+2}, 8'); a('s_min_u32 s35, s35, s56'); a('s_cmp_gt_u32 s35, s46')
    def far():
        a(f's_cmp_ge_u32 s35, {FASTS}'); a('s_cbranch_scc1 LA_p'); a(f's_sleep {FARS}')
    poll_ws(a, VT0, 49, cond, 'LA_p', fail, width=2, sleep=2, far=far)
    lastrt(a, 9)
    a(f's_add_u32 s53, s52, {KVM}'); a('s_add_u32 s55, s53, 4096')
    for f in range(4): a(f'buffer_load_dwordx4 {vr(KM+4*f,4)}, v{L16}, s[12:15], s53 offen offset:{f*1024} sc1')
    for w in range(4): a(f'buffer_load_dwordx2 {vr(VM+2*w,2)}, v{L8}, s[12:15], s55 offen offset:{w*512} sc1')
    a('s_add_u32 s53, s51, s50'); a('s_lshl_b32 s55, s46, 7'); a('s_add_u32 s55, s55, s60')
    a(f'v_mov_b32 v{VT0}, 0'); a(f'v_mov_b32 v{VT0+1}, 1')
    for f in range(4): a(f'v_mfma_f32_16x16x32_bf16 {vr(SM,4)}, {vr(KM+4*f,4)}, {vr(QF+4*f,4)}, {"0" if f == 0 else vr(SM,4)}')
    a(f'v_max_f32 v{M}, v{SM}, v{SM+1}')
    xred('v_max_f32', M)
    a(f'v_mul_f32 v{M}, s54, v{M}'); a(f'v_max_f32 v{M}, v{M}, v{MX}')
    a(f'v_fma_f32 v{SM}, v{SM}, s54, -v{M}'); a(f'v_fma_f32 v{SM+1}, v{SM+1}, s54, -v{M}'); a(f'v_sub_f32 v{AL}, v{MX}, v{M}')
    a(f'v_exp_f32 v{SM}, v{SM}'); a(f'v_exp_f32 v{SM+1}, v{SM+1}'); a(f'v_exp_f32 v{AL}, v{AL}')
    a(f'v_add_f32 v{M}, v{SM}, v{SM+1}'); a(f'v_fma_f32 v{M}, v{LX}, v{AL}, v{M}')
    xred('v_add_f32', M)
    a(f'v_rcp_f32 v{M}, v{M}')
    a(f'v_mul_f32 v{SM}, v{SM}, v{M}'); a(f'v_mul_f32 v{SM+1}, v{SM+1}, v{M}'); a(f'v_mul_f32 v{AL}, v{AL}, v{M}')
    a(f'v_cvt_pk_bf16_f32 v{PM}, v{SM}, v{SM+1}'); a(f'v_cvt_pk_bf16_f32 v{PM+3}, v{SM}, v{SM+1}')
    for r in range(0, 32, 2): a(f'v_pk_mul_f32 {vr(O+r,2)}, {vr(O+r,2)}, {vr(AL,2)} op_sel_hi:[1,0]')
    for Tt in range(8):
        d = vr(O + 4 * Tt, 4)
        a(f'v_mfma_f32_16x16x16_bf16 {d}, {vr(VM+2*(Tt>>1),2)}, {vr(PM+2*(Tt&1),2)}, {d}')
    for f in range(4):
        b = O + 8 * f
        for r in range(4): a(f'v_cvt_pk_bf16_f32 v{b+r}, v{b+r}, v{b+4+r}')
        a(f'buffer_store_dwordx4 {vr(b,4)}, v{L16}, s[12:15], s53 offen offset:{f*1024} sc1')
    lastrt(a, 10)
    a('s_waitcnt vmcnt(0)'); a('s_barrier')
    a('s_mov_b64 exec, 1')
    a(f'buffer_atomic_add v{VT0+1}, v{VT0}, s[12:15], s55 offen')
    a('s_mov_b64 exec, -1')
    a(f's_add_u32 s46, s46, {NWX//2}'); a('s_cmp_lt_u32 s46, 64'); a('s_cbranch_scc1 LA_loop')

def gen_proj_load(a):
    a('s_load_dwordx2 s[20:21], s[0:1], 40'); a('s_load_dwordx2 s[22:23], s[0:1], 80'); a('s_load_dwordx2 s[24:25], s[0:1], 96')
    a(f's_mul_i32 s33, s{SW}, {9*4096}')
    set_vtr(a, 33, 4)
    lane_rows(a, 12, 4, 'r16', 1280)
    a('s_waitcnt lgkmcnt(0)')
    a.srd(36, 20, 5242880); a.srd(40, 22, 2211840); a.srd(16, 24, 2621440)
    a(f's_lshl_b32 s34, s47, 6'); a(f's_mul_i32 s44, s{SW}, {1024*1280}'); a('s_add_u32 s44, s44, s34')
    a(f's_mul_i32 s45, s{SW}, {448*1280}'); a('s_add_u32 s45, s45, s34')
    a('s_barrier')
    units = []
    for n in range(23):
        j = n if n < 7 else n - 7
        loc = wreg(16 + n, 7) if n < 7 else wreg(n - 7, 7)
        units.append((40 if n < 7 else 36, 45 if n < 7 else 44, [(64 * j + 32 * (i >> 1) + 2 * (i & 1)) * 1280 for i in range(4)], 12, loc))
    load_units(a, units, 9, 33, 'pw', toff=8)
    a('s_waitcnt vmcnt(0) lgkmcnt(0)'); a('s_barrier')

def gen_proj(a, fail):
    AA, AB, RING, NR = 16, 24, 32, 28
    GV, VO, VLW = 12, 14, 15
    a(f'v_bfe_u32 v{VT0+6}, v{L16}, 4, 4'); a(f'v_mul_u32_u24 v{VO}, 1280, v{VT0+6}'); a(f'v_lshrrev_b32 v{VT0+7}, 8, v{L16}'); a(f'v_lshl_add_u32 v{VO}, v{VT0+7}, 4, v{VO}')
    a(f'v_lshlrev_b32 v{VXS}, 2, v{VT0+6}')
    a(f's_lshl_b32 s34, s{SW}, 11'); a(f'v_add_u32 v{VLW}, s34, v{L16}')
    a(f's_mul_i32 s48, s{SW}, {14*1024}'); a('s_lshl_b32 s34, s58, 16'); a('s_add_u32 s48, s48, s34'); a(f's_add_u32 s48, s48, {HG}')
    a(f's_lshl_b32 s49, s{SW}, 15'); a('s_lshl_b32 s34, s58, 17'); a('s_add_u32 s49, s49, s34'); a(f's_add_u32 s49, s49, {OG}')
    a('s_mul_i32 s50, s58, 20480'); a('s_lshl_b32 s34, s47, 6'); a('s_add_u32 s50, s50, s34')
    a(f's_lshl_b32 s60, s58, 6'); a(f's_add_u32 s60, s60, {GG}')
    def gemm(nks, base_s, acc, wloc):
        def ld(ks):
            if (ks & 3) == 0: a(f's_add_u32 s56, s{base_s}, {ks*1024}')
            a(f'buffer_load_dwordx4 {vr(RING+4*(ks % NR),4)}, v{L16}, s[12:15], s56 offen offset:{(ks&3)*1024} sc1')
        for n in range(min(NR, nks)): ld(n)
        for ks in range(nks):
            k, b = wloc(ks >> 1)
            for t in range(2):
                c = vr(acc + 4 * t, 4)
                a(f'v_mfma_f32_16x16x32_bf16 {c}, {k}[{b+8*t+4*(ks&1)}:{b+8*t+4*(ks&1)+3}], {vr(RING+4*(ks % NR),4)}, {"0" if ks == 0 else c}')
            if ks + NR < nks: ld(ks + NR)
    a.label('LP_loop')
    a('s_lshl_b32 s51, s46, 17'); a('s_add_u32 s51, s51, s48')
    a('s_lshl_b32 s52, s46, 18'); a('s_add_u32 s52, s52, s49')
    a('s_lshl_b32 s53, s46, 7'); a('s_add_u32 s54, s53, s60'); a(f's_add_u32 s53, s54, {FLG + 32*128 - GG}')
    a(f'buffer_load_dword v{GV}, v{VXS}, s[12:15], s54 offen sc1')
    gemm(14, 51, AB, lambda j: wreg(16 + j, 7))
    a(f'v_sub_f32 v{VT0+6}, 1.0, v{GV}')
    for r in range(8): a(f'v_mul_f32 v{AB+r}, v{AB+r}, v{VT0+6}')
    def cond():
        a(f'v_readfirstlane_b32 s35, v{VT0+2}'); a('s_cmp_ge_u32 s35, 8')
    a(f's_cmp_lg_u32 s{SW}, 0'); a('s_cbranch_scc1 LP_p_ok')
    def farp():
        a('s_cmp_ge_u32 s46, 61'); a('s_cbranch_scc1 LP_p'); a('s_sleep 24')
    poll_ws(a, VT0, 53, cond, 'LP_p', fail, sleep=2, far=farp)
    a('s_barrier')
    lastrt(a, 9)
    gemm(32, 52, AA, lambda j: wreg(j, 7))
    for r in range(8): a(f'v_fma_f32 v{AB+r}, v{AA+r}, v{GV}, v{AB+r}')
    lastrt(a, 10)
    for q in range(2): a(f'ds_write_b128 v{VLW}, {vr(AB+4*q,4)} offset:{q*1024}')
    a('s_waitcnt lgkmcnt(0)'); a('s_barrier')
    a(f's_cmp_ge_u32 s{SW}, 1'); a('s_cbranch_scc1 LP_skip')
    for w in range(4):
        for t in range(2): a(f'ds_read_b128 {vr(RING+8*w+4*t,4)}, v{L16} offset:{w*2048 + t*1024}')
    for r in range(8):
        a(f'v_add_f32 v{RING+r}, v{RING+r}, v{RING+8+r}'); a(f'v_add_f32 v{RING+16+r}, v{RING+16+r}, v{RING+24+r}')
    for r in range(8): a(f'v_add_f32 v{RING+r}, v{RING+r}, v{RING+16+r}')
    for i in range(4): a(f'v_cvt_pk_bf16_f32 v{RING+32+i}, v{RING+2*i}, v{RING+2*i+1}')
    a('s_mul_i32 s34, s46, 40960'); a('s_add_u32 s34, s34, s50')
    a(f'buffer_store_dwordx4 {vr(RING+32,4)}, v{VO}, s[16:19], s34 offen sc1')
    a.label('LP_skip')
    a('s_barrier')
    a(f's_add_u32 s46, s46, {NWX//2}'); a('s_cmp_lt_u32 s46, 64'); a('s_cbranch_scc1 LP_loop')

DELAY = 0
FASTS = 62
FARS = 40
def gen_worker(a, endlab):
    if DELAY:
        a(f's_mov_b32 s34, {DELAY}'); a.label('LW_dl'); a('s_sleep 32'); a('s_sub_u32 s34, s34, 1'); a('s_cmp_lg_u32 s34, 0'); a('s_cbranch_scc1 LW_dl')
    gen_phase1(a)
    a(f's_lshr_b32 s46, s{SU}, 5'); a(f's_and_b32 s47, s{SU}, 31')
    a('s_cmp_ge_u32 s47, 28'); a(f's_cbranch_scc1 {endlab}')
    a('s_cmp_ge_u32 s47, 20'); a('s_cbranch_scc1 LW_attn')
    gen_proj_load(a)
    rt(a)
    wait_dbg(a, D_P1B, NWG, 'LW_w1', endlab)
    rt(a)
    a('s_and_b32 s58, s46, 1'); a('s_lshr_b32 s46, s46, 1')
    gen_proj(a, endlab)
    rt(a)
    a(f's_branch {endlab}')
    a.label('LW_attn')
    a('s_sub_u32 s47, s47, 20'); a('s_lshl_b32 s47, s47, 2'); a(f's_add_u32 s47, s47, s{SW}')
    wait_dbg(a, D_P1B, NWG, 'LW_w2', endlab)
    rt(a)
    a('s_and_b32 s58, s46, 1'); a('s_lshr_b32 s46, s46, 1')
    gen_attn(a, endlab)
    rt(a)
```
